```python
import torch

def _softmax(x, axis=-1):
    return torch.softmax(x, dim=axis)
def _gelu(x):
    return torch.nn.functional.gelu(x, approximate="tanh")
def _silu(x):
    return torch.nn.functional.silu(x)
def _sigmoid(x):
    return torch.sigmoid(x)
def _layernorm(x, axis=-1, eps=1e-5):
    m = x.mean(dim=axis, keepdim=True)
    v = x.var(dim=axis, keepdim=True, unbiased=False)
    return (x - m) / torch.sqrt(v + eps)
def _scatter_add(tgt, idx, src, axis=0):
    return tgt.clone().index_add_(axis, idx, src)
def _segment_sum(src, seg, n):
    out = torch.zeros((n,) + src.shape[1:], dtype=src.dtype)
    return out.index_add_(0, seg, src)
def _pad(x, pw):
    flat = tuple(v for pair in reversed(pw) for v in pair)
    return torch.nn.functional.pad(x, flat)

kernel_name = 'standalone__ssm_conv_s4__prompt'

def setup_inputs():

    _w = (lambda a: (lambda t: t.to(torch.bfloat16) if t.is_floating_point() else t)(torch.as_tensor(a)))
    B, L, D, N = 1, 2048, 1024, 128
    A_re = -(lambda _x: torch.exp(torch.as_tensor(_x)))((lambda *s: torch.randn(*s, dtype=torch.bfloat16) * 3.2)(D, N))
    A_im = torch.pi * (lambda *s: torch.randn(*s, dtype=torch.bfloat16) * 0.05)(D, N)
    B_re = (lambda *s: torch.randn(*s, dtype=torch.bfloat16) * 0.1)(D, N)
    B_im = (lambda *s: torch.randn(*s, dtype=torch.bfloat16) * 0.1)(D, N)
    C_re = (lambda *s: torch.randn(*s, dtype=torch.bfloat16) * 0.1)(D, N)
    C_im = (lambda *s: torch.randn(*s, dtype=torch.bfloat16) * 0.1)(D, N)
    log_dt = (lambda *s: torch.randn(*s, dtype=torch.bfloat16) * 0.05)(D) * 0.5 - 4.0
    Dskip = (lambda *s: torch.randn(*s, dtype=torch.bfloat16) * 0.05)(D)
    return {
        "u": _w((lambda *s: torch.randn(*s, dtype=torch.bfloat16) * 0.05)(B, L, D)),
        "A_re": _w(A_re),
        "A_im": _w(A_im),
        "B_re": _w(B_re),
        "B_im": _w(B_im),
        "C_re": _w(C_re),
        "C_im": _w(C_im),
        "log_dt": _w(log_dt),
        "Dskip": _w(Dskip),
    }

def reference(u, A_re, A_im, B_re, B_im, C_re, C_im, log_dt, Dskip):
    Bsz, L, D = u.shape
    dt = torch.exp(log_dt)[:, None]
    A = A_re + 1j * A_im
    Bc = B_re + 1j * B_im
    Cc = C_re + 1j * C_im
    logdA = dt * A
    dB = dt * Bc
    l = (lambda x, dt: x.to(dt))(torch.arange(L), A_re.dtype)
    P = torch.exp(logdA[:, :, None] * l[None, None, :])
    K = torch.einsum("dn,dnl,dn->dl", Cc, P, dB).real
    L2 = 2 * L
    Kp = _pad(K, ((0, 0), (0, L)))
    up = (lambda x, *d: x.permute(*d))(u, 0, 2, 1)
    up = _pad(up, ((0, 0), (0, 0), (0, L)))
    Kf = (lambda x, axes=(-2,-1): torch.fft.rfft2(x.float(), dim=axes))(Kp[:, None, :], axes=(-2, -1))
    Uf = (lambda x, axes=(-2,-1): torch.fft.rfft2(x.float(), dim=axes))(up[:, :, None, :], axes=(-2, -1))
    Yf = Uf * Kf[None, :, :, :]
    y = (lambda x, s, axes=(-2,-1): torch.fft.irfft2(x, s=s, dim=axes).to(torch.bfloat16))(Yf, (1, L2), axes=(-2, -1))[:, :, 0, :L]
    y = (lambda x, *d: x.permute(*d))(y, 0, 2, 1) + u * Dskip[None, None, :]
    return y
```

```python
import re, copy

TRANS = ('v_exp_f32', 'v_log_f32', 'v_rcp_f32', 'v_rsq_f32', 'v_sqrt_f32', 'v_sin_f32', 'v_cos_f32')


def regs_of(tok):
    tok = tok.strip()
    tok = tok.lstrip('-')
    m = re.fullmatch(r'abs\((.*)\)', tok) or re.fullmatch(r'\|(.*)\|', tok)
    if m:
        tok = m.group(1)
    m = re.fullmatch(r'([vsa])(\d+)', tok)
    if m:
        return [tok]
    m = re.fullmatch(r'([vsa])\[(\d+):(\d+)\]', tok)
    if m:
        return [f'{m.group(1)}{i}' for i in range(int(m.group(2)), int(m.group(3)) + 1)]
    if tok in ('vcc', 'exec', 'm0'):
        return [tok]
    if tok in ('vcc_lo', 'vcc_hi'):
        return ['vcc']
    if tok in ('exec_lo', 'exec_hi'):
        return ['exec']
    return []


class Ins:
    __slots__ = ('text', 'op', 'dst', 'src', 'kind', 'srcC', 'srcAB', 'passes', 'wide_store', 'dpp')


def parse(text):
    t = text.strip()
    parts = t.split(None, 1)
    op = parts[0]
    rest = parts[1] if len(parts) > 1 else ''
    ops, depth, cur = [], 0, ''
    for ch in rest:
        if ch == '[':
            depth += 1
        if ch == ']':
            depth -= 1
        if ch == ',' and depth == 0:
            ops.append(cur)
            cur = ''
        else:
            cur += ch
    if cur.strip():
        ops.append(cur)
    if ops:
        ops[-1] = ops[-1].strip().split(' ')[0]
    ops = [o.strip() for o in ops]
    i = Ins()
    i.text, i.op = t, op
    i.srcC, i.srcAB, i.passes, i.wide_store = [], [], 0, False
    i.dpp = '_dpp' in op or 'row_' in rest or 'wave_sh' in rest or 'quad_perm' in rest
    R = [regs_of(o) for o in ops]
    flat = lambda l: [r for x in l for r in x]
    if op.startswith('v_mfma'):
        i.kind = 'mfma'
        i.dst = R[0]
        i.srcAB = R[1] + R[2]
        i.srcC = R[3]
        i.src = i.srcAB + i.srcC
        i.passes = 8 if '32x32' in op else 4
    elif op.startswith('v_'):
        i.kind = 'trans' if any(op.startswith(x) for x in TRANS) else 'valu'
        i.dst = R[0]
        i.src = flat(R[1:])
        if op.startswith(('v_fmac', 'v_writelane', 'v_pk_fmac')) or i.dpp:
            i.src = i.src + R[0]
        if op.startswith('v_cndmask') and len(ops) == 3:
            i.src = i.src + ['vcc']
        if op.startswith(('v_add_co', 'v_addc_co', 'v_sub_co')):
            i.dst = R[0] + R[1]
            i.src = flat(R[2:])
    elif op.startswith('ds_read'):
        i.kind = 'lds'
        i.dst = R[0]
        i.src = flat(R[1:])
    elif op.startswith('ds_'):
        i.kind = 'lds'
        i.dst = []
        i.src = flat(R)
        if 'addtid' in op:
            i.src = i.src + ['m0']
    elif op.startswith(('buffer_load', 'global_load')):
        i.kind = 'vmem'
        if 'lds' in op or ' lds' in rest:
            i.dst = []
            i.src = flat(R) + ['m0']
        else:
            i.dst = R[0]
            i.src = flat(R[1:])
    elif op.startswith(('buffer_store', 'global_store')):
        i.kind = 'vmem'
        i.dst = []
        i.src = flat(R)
        i.wide_store = 'x4' in op or 'x3' in op
    elif op.startswith(('s_load', 's_memtime', 's_memrealtime', 's_buffer_load')):
        i.kind = 'smem'
        i.dst = R[0]
        i.src = flat(R[1:])
    elif op.startswith('s_'):
        i.kind = 'salu'
        if op.startswith(('s_cmp', 's_cbranch', 's_branch', 's_waitcnt', 's_nop', 's_barrier', 's_setprio', 's_endpgm', 's_sleep', 's_setpc')):
            i.dst = []
            i.src = flat(R)
        else:
            i.dst = R[0]
            i.src = flat(R[1:])
    else:
        raise ValueError(text)
    return i


class Asm:
    def __init__(self):
        self.lines = []
        self.hist = []
        self.lgkm = []
        self.smem = []
        self.vm = []
        self.nops = 0
        self.stats = {}

    def fork(self):
        o = Asm()
        o.hist = list(self.hist)
        o.lgkm = [list(x) for x in self.lgkm]
        o.smem = list(self.smem)
        o.vm = [list(x) for x in self.vm]
        return o

    def raw(self, s):
        self.lines.append(s)

    def label(self, s):
        self.lines.append(s + ':')

    def comment(self, s):
        self.lines.append('    ; ' + s)

    def _push(self, i, states=1):
        self.lines.append('    ' + i.text)
        self.hist.append((i, states))
        if len(self.hist) > 40:
            self.hist.pop(0)
        self.stats[i.kind] = self.stats.get(i.kind, 0) + 1

    def wait(self, vm=None, lgkm=None):
        parts = []
        if vm is not None:
            parts.append(f'vmcnt({vm})')
            self.vm = self.vm[len(self.vm) - vm:] if vm < len(self.vm) and vm > 0 else ([] if vm == 0 else self.vm)
        if lgkm is not None:
            parts.append(f'lgkmcnt({lgkm})')
            if lgkm == 0:
                self.lgkm, self.smem = [], []
            else:
                assert not self.smem, 'counted lgkmcnt with scalar loads outstanding'
                if lgkm < len(self.lgkm):
                    self.lgkm = self.lgkm[len(self.lgkm) - lgkm:]
        self._push(parse('s_waitcnt ' + ' '.join(parts)))

    def nop(self, n):
        while n > 0:
            k = min(n, 16)
            self._push(parse(f's_nop {k-1}'), k)
            self.nops += k
            n -= k

    def _need_states(self, i):
        need = 0
        dist = 0
        rs, ws = set(i.src), set(i.dst)
        for p, st in reversed(self.hist):
            req = 0
            pd = set(p.dst)
            pv = {r for r in pd if r[0] in 'va' and r != 'vcc'}
            ps = pd - pv
            if p.kind == 'mfma':
                big = 12 if p.passes == 8 else 8
                if i.kind == 'mfma':
                    if pd & set(i.srcAB):
                        req = max(req, big)
                    if pd & set(i.srcC):
                        if not (list(p.dst) == list(i.srcC) and p.passes == i.passes):
                            req = max(req, big - 2)
                    elif pd & ws:
                        req = max(req, big)
                elif i.kind in ('valu', 'trans', 'lds', 'vmem'):
                    if pd & (rs | ws):
                        req = max(req, big)
                    if i.kind in ('valu', 'trans') and set(p.srcC) & ws:
                        req = max(req, 7 if p.passes == 8 else 3)
            elif p.kind in ('valu', 'trans'):
                if i.kind == 'mfma' and pv & rs:
                    req = max(req, 2)
                if i.kind == 'mfma' and 'exec' in pd:
                    req = max(req, 4)
                if p.kind == 'trans' and i.kind == 'valu' and pv & rs:
                    req = max(req, 1)
                if p.kind == 'trans' and i.kind in ('lds', 'vmem') and pv & rs:
                    req = max(req, 1)
                if i.kind in ('valu', 'trans'):
                    if i.dpp and pv & rs:
                        req = max(req, 2)
                    if i.op.startswith(('v_readlane', 'v_readfirstlane')) and pv & rs:
                        req = max(req, 1)
                    if i.op.startswith('v_permlane') and pv & (rs | ws):
                        req = max(req, 2)
                    if ps & rs:
                        req = max(req, 4 if i.op.startswith(('v_readlane', 'v_writelane')) else 2)
                if i.kind == 'vmem' and ps & rs:
                    req = max(req, 5)
                if i.kind in ('salu', 'smem') and ps & rs:
                    req = max(req, 1)
            elif p.kind == 'salu':
                if 'm0' in pd and 'm0' in rs and i.kind in ('lds', 'vmem'):
                    req = max(req, 1)
            elif p.kind == 'vmem' and p.wide_store:
                if set(p.src) & ws and i.kind in ('valu', 'trans', 'mfma'):
                    req = max(req, 2)
                elif set(p.src) & ws:
                    req = max(req, 1)
            need = max(need, req - dist)
            dist += st
            if dist >= 20:
                break
        return need

    def __call__(self, text):
        for ln in text.strip().split('\n'):
            ln = ln.split(';')[0].strip()
            if ln:
                self.one(ln)

    def one(self, text):
        i = parse(text)
        touched = set(i.src) | set(i.dst)
        wv = wl = None
        for n, d in enumerate(self.vm):
            if touched & set(d):
                wv = len(self.vm) - 1 - n
        for n, d in enumerate(self.lgkm):
            if touched & set(d):
                wl = len(self.lgkm) - 1 - n
        if touched & set(self.smem):
            wl = 0
        if wl is not None and self.smem:
            wl = 0
        if wl is not None:
            wl = min(wl, 15)
        if wv is not None or wl is not None:
            self.wait(vm=wv, lgkm=wl)
        n = self._need_states(i)
        if n > 0:
            self.nop(n)
        self._push(i)
        if i.kind == 'lds':
            self.lgkm.append(list(i.dst))
        elif i.kind == 'vmem':
            self.vm.append(list(i.dst))
        elif i.kind == 'smem':
            self.smem += list(i.dst) or ['?']

    def barrier(self):
        if self.lgkm_has_write():
            self.wait(lgkm=self.lgkm_after_last_write())
        self.one('s_barrier')

    def lgkm_has_write(self):
        return any(len(d) == 0 for d in self.lgkm)

    def lgkm_after_last_write(self):
        last = max(n for n, d in enumerate(self.lgkm) if len(d) == 0)
        k = len(self.lgkm) - 1 - last
        return 0 if self.smem else min(k, 15)

    def text(self):
        return '\n'.join(self.lines) + '\n'


def vr(a, n=1):
    return f'v{a}' if n == 1 else f'v[{a}:{a+n-1}]'


def sr(a, n=1):
    return f's{a}' if n == 1 else f's[{a}:{a+n-1}]'
```

```python
import sys
from asmlib import Asm, vr, sr

KNAME = 'standalone__ssm_conv_s4__prompt_kernel'

RS = 15040
ROW = 272
UT = 8 * RS
US = 4144
BAND = UT + 8 * US
LDS_BYTES = BAND + 8 * 1024
T1A = 608
T2 = 8 * T1A
T3 = T2 + 504
STG = 5696
assert T3 + 320 <= STG and STG + 5 * 576 <= RS and LDS_BYTES <= 163840

XROW = {0: 0, 1: 1, 2: 2, 3: 3, 4: 4, 5: 5, 6: 6, 7: 7, 256: 8, 258: 9, 260: 10, 1800: 11, 512: 12, 262: 13, 264: 14, 8: 15,
        516: 16, 520: 17, 1032: 18, 1288: 19, 772: 20, 776: 21, 1544: 22}

S_U, S_OUT = 24, 28
S_WAVE, S_ROLE, S_CG, S_BASE, S_PB = 32, 33, 34, 35, 36
S_T = 38
S_SELLO, S_SELHI, S_4096, S_HIMASK = 48, 49, 50, 51
S_L0, S_L032 = 52, 54
S_TILE = 56
S_KN = 57
S_STAMP = 60

(V_LANE, V_YR, V_XR, V_UF, V_UW, V_K1A, V_K1B, V_K2, V_K3, V_WA, V_WB, V_WA3, V_WB3, V_T3W, V_SW, V_SR, V_OUT,
 V_UL0, V_UL1, V_USW, V_DSK, V_ZERO) = range(1, 23)
V_US = 24
V_BAND = 28
V_ACC = 56
V_KD = 76
V_K2F = 144
V_K3F = 168
V_G = 184
V_RAW = 208
V_PK = 232
V_URAW = 56
V_PAR = 72
V_CC = 80
V_W = 86
V_FR = 144
V_D = 208
V_TMP = 224


def gen(opt):
    a = Asm()
    stamp_n = [0]

    def stamp(a):
        if opt.get('stamps'):
            a.raw(f'    s_memtime {sr(S_STAMP + 2*stamp_n[0], 2)}')
            a.smem.append('?')
            stamp_n[0] += 1

    if opt.get('stamps'):
        a.raw(f'    s_memrealtime {sr(90, 2)}')
    stamp(a)
    a(f's_load_dwordx16 s[4:19], s[0:1], 0')
    a(f's_load_dwordx4 s[20:23], s[0:1], 64')
    if opt.get('stamps'):
        a(f's_load_dwordx2 s[94:95], s[0:1], 88')
    a('s_cmp_ge_u32 s2, 256')
    a('s_cbranch_scc1 L_end')
    if opt.get('prefetch', 1):
        a(f's_getpc_b64 {sr(S_T, 2)}')
        a(f'v_lshlrev_b32 v{V_TMP}, 7, v0')
        a(f'v_min_u32 v{V_TMP}, CODE_LAST, v{V_TMP}')
        a(f'v_readfirstlane_b32 s{S_WAVE}, v0')
        a(f's_cmp_ge_u32 s{S_WAVE}, 128')
        a('s_cbranch_scc1 L_nopf')
        a.raw(f'    global_load_dword v{V_TMP+1}, v{V_TMP}, {sr(S_T, 2)}')
        a.label('L_nopf')
        a.vm.append([f'v{V_TMP+1}'])
    else:
        a(f'v_readfirstlane_b32 s{S_WAVE}, v0')
    a(f'''
    v_and_b32 v{V_LANE}, 63, v0
    s_lshr_b32 s{S_WAVE}, s{S_WAVE}, 6
    s_and_b32 s{S_T+2}, s2, 7
    s_lshr_b32 s{S_T+3}, s2, 3
    s_lshr_b32 s{S_ROLE}, s{S_T+3}, 4
    s_and_b32 s{S_T+4}, s{S_T+3}, 15
    s_lshl_b32 s{S_T+2}, s{S_T+2}, 4
    s_add_u32 s{S_T+2}, s{S_T+2}, s{S_T+4}
    s_lshl_b32 s{S_CG}, s{S_T+2}, 4
    s_lshl_b32 s{S_T+2}, s{S_T+2}, 3
    s_add_u32 s{S_T+2}, s{S_T+2}, s{S_WAVE}
    s_lshl_b32 s{S_T+4}, s{S_T+2}, 8
    s_lshl_b32 s{S_T+2}, s{S_T+2}, 1
    v_lshl_add_u32 v{V_TMP+2}, v{V_LANE}, 2, s{S_T+4}
    v_mov_b32 v{V_TMP+3}, s{S_T+2}
    s_add_u32 s{S_PB}, s{S_WAVE}, s{S_T+3}
    s_and_b32 s{S_PB}, s{S_PB}, 7
    s_mov_b32 s{S_U+3}, 0x00020000
    s_mov_b32 s{S_OUT+3}, 0x00020000
    s_mov_b32 s{S_OUT+2}, 4194304
    s_cmp_eq_u32 s{S_ROLE}, 0
    s_cselect_b32 s{S_U+2}, {1280*2048}, s{S_OUT+2}
    s_cselect_b32 s{S_T+5}, 512, 0
    s_lshl_b32 s{S_T+6}, s{S_PB}, 8
    s_sub_u32 s{S_T+6}, s{S_T+6}, s{S_T+5}
    s_lshl_b32 s{S_T+6}, s{S_T+6}, 11
    s_add_u32 s{S_T+6}, s{S_T+6}, s{S_CG}
    v_lshl_add_u32 v{V_UL1}, v{V_LANE}, 13, s{S_T+6}
    v_add_u32 v{V_UL0}, 0xfffff800, v{V_UL1}
    s_movk_i32 s{S_4096}, 4096
    ''')
    a(f'global_load_ushort v{V_PAR+6}, v{V_TMP+3}, s[18:19]')
    for k in range(6):
        a(f'global_load_dword v{V_PAR+k}, v{V_TMP+2}, s[{6+2*k}:{7+2*k}]')
    a(f'global_load_ushort v{V_PAR+7}, v{V_TMP+3}, s[20:21]')
    a(f'''
    s_mov_b32 s{S_U}, s4
    s_mov_b32 s{S_U+1}, s5
    s_mov_b32 s{S_OUT}, s22
    s_mov_b32 s{S_OUT+1}, s23
    ''')

    def uload(k):
        if k == 0:
            a(f'buffer_load_dwordx4 {vr(V_URAW, 4)}, v{V_UL0}, {sr(S_U, 4)}, 0 offen')
        elif k == 1:
            a(f'buffer_load_dwordx4 {vr(V_URAW+4, 4)}, v{V_UL1}, {sr(S_U, 4)}, 0 offen')
        elif k == 2:
            a(f'buffer_load_dwordx4 {vr(V_URAW+8, 4)}, v{V_UL1}, {sr(S_U, 4)}, 0 offen offset:2048')
        else:
            a(f'buffer_load_dwordx4 {vr(V_URAW+12, 4)}, v{V_UL1}, {sr(S_U, 4)}, s{S_4096} offen')
    uload(0)
    uload(1)
    stamp(a)

    C, H, F, G, T0, T1_, T2_, T3_ = range(V_TMP + 4, V_TMP + 12)
    a(f'''
    s_mul_i32 s{S_BASE}, s{S_WAVE}, {RS}
    s_mov_b32 m0, s{S_BASE}
    v_and_b32 v{C}, 31, v{V_LANE}
    v_lshrrev_b32 v{H}, 5, v{V_LANE}
    v_and_b32 v{F}, 15, v{V_LANE}
    v_lshrrev_b32 v{G}, 4, v{V_LANE}
    v_mov_b32 v{V_ZERO}, 0
    s_mov_b32 s{S_SELLO}, 0x05040100
    s_mov_b32 s{S_SELHI}, 0x07060302
    s_mov_b32 s{S_HIMASK}, 0xffff0000
    s_mov_b64 {sr(S_L0, 2)}, 1
    s_mov_b32 s{S_L032}, 1
    s_mov_b32 s{S_L032+1}, 1
    ''')
    lo = [6, 11, 14, 19, 5, 12, 5, 5]
    hi = [11, 14, 19, 22, 12, 21, 6, 6]
    pk_lo = sum(v << (8 * k) for k, v in enumerate(lo))
    pk_hi = sum(v << (8 * k) for k, v in enumerate(hi))
    B0 = V_TMP + 12
    a(f'''
    s_lshl_b32 s{S_T+2}, s{S_WAVE}, 3
    s_mov_b32 s{S_T+4}, {pk_lo & 0xffffffff}
    s_mov_b32 s{S_T+5}, {pk_lo >> 32}
    s_mov_b32 s{S_T+6}, {pk_hi & 0xffffffff}
    s_mov_b32 s{S_T+7}, {pk_hi >> 32}
    s_lshr_b64 {sr(S_T+4, 2)}, {sr(S_T+4, 2)}, s{S_T+2}
    s_lshr_b64 {sr(S_T+6, 2)}, {sr(S_T+6, 2)}, s{S_T+2}
    s_and_b32 s{S_T+4}, s{S_T+4}, 255
    s_and_b32 s{S_T+6}, s{S_T+6}, 255
    s_mov_b32 s{S_T+8}, 0x7f7f7f7f
    s_cmp_ge_u32 s{S_WAVE}, 6
    s_cselect_b32 s{S_T+8}, 0x01010101, s{S_T+8}
    s_cselect_b32 s{S_T+3}, 8, 1
    s_mov_b32 s{S_T+9}, s{S_T+8}
    v_lshlrev_b32 v{T0}, 3, v{G}
    v_sub_u32 v{T0}, v{T0}, v{F}
    v_add_u32 v{T0}, -14, v{T0}
    v_add_lshl_u32 v{T1_}, v{T0}, s{S_T+4}, 3
    v_add_lshl_u32 v{T2_}, v{T0}, s{S_T+6}, 3
    v_med3_i32 v{T1_}, v{T1_}, 0, 63
    v_med3_i32 v{T2_}, v{T2_}, 0, 63
    v_lshrrev_b64 {vr(B0, 2)}, v{T1_}, {sr(S_T+8, 2)}
    v_lshrrev_b64 {vr(B0+2, 2)}, v{T2_}, {sr(S_T+8, 2)}
    s_mov_b32 s{S_T+4}, 0x010c000c
    s_mov_b32 s{S_T+5}, 0x030c020c
    v_xor_b32 v{B0}, v{B0}, v{B0+2}
    v_xor_b32 v{B0+1}, v{B0+1}, v{B0+3}
    v_perm_b32 v{B0+4}, v{B0}, v{B0}, s{S_T+4}
    v_perm_b32 v{B0+5}, v{B0}, v{B0}, s{S_T+5}
    v_perm_b32 v{B0+6}, v{B0+1}, v{B0+1}, s{S_T+4}
    v_perm_b32 v{B0+7}, v{B0+1}, v{B0+1}, s{S_T+5}
    v_lshrrev_b32 v{B0+4}, s{S_T+3}, v{B0+4}
    v_lshrrev_b32 v{B0+5}, s{S_T+3}, v{B0+5}
    v_lshrrev_b32 v{B0+6}, s{S_T+3}, v{B0+6}
    v_lshrrev_b32 v{B0+7}, s{S_T+3}, v{B0+7}
    v_lshlrev_b32 v{T3_}, 4, v0
    v_add_u32 v{T3_}, {BAND}, v{T3_}
    ds_write_b128 v{T3_}, {vr(B0+4, 4)}
    v_mov_b32 v{T1_}, 0x3f80
    ds_write_addtid_b32 v{T1_} offset:0
    ''')
    a(f'''
    s_movk_i32 s{S_T+2}, {ROW}
    v_lshl_add_u32 v{T0}, v{H}, 4, s{S_BASE}
    v_mad_u32_u24 v{V_YR}, v{C}, s{S_T+2}, v{T0}
    v_add_u32 v{T1_}, -12, v{C}
    v_cmp_gt_u32 vcc, 24, v{C}
    v_add_u32 v{T0}, {32*ROW}, v{T0}
    v_cndmask_b32 v{T1_}, v{T1_}, v{C}, vcc
    v_writelane_b32 v{T1_}, 4, 11
    v_writelane_b32 v{T1_}, 4, 43
    v_writelane_b32 v{T1_}, 10, 12
    v_writelane_b32 v{T1_}, 10, 44
    v_writelane_b32 v{T1_}, 11, 23
    v_writelane_b32 v{T1_}, 11, 55
    v_mad_u32_u24 v{V_XR}, v{T1_}, s{S_T+2}, v{T0}
    ''')
    a(f'''
    s_mul_i32 s{S_T+2}, s{S_WAVE}, {US}
    s_add_u32 s{S_T+2}, s{S_T+2}, {UT}
    v_lshl_add_u32 v{T0}, v{F}, 5, s{S_T+2}
    v_lshl_add_u32 v{V_UF}, v{G}, 4, v{T0}
    s_lshl_b32 s{S_T+3}, s{S_PB}, 9
    s_add_u32 s{S_T+3}, s{S_T+3}, {UT+40}
    v_lshl_add_u32 v{V_UW}, v{V_LANE}, 3, s{S_T+3}
    v_cmp_gt_u32 vcc, 5, v{V_LANE}
    v_mov_b32 v{T0}, {4136//8}
    s_lshl_b32 s{S_T+3}, s{S_WAVE}, 1
    s_add_u32 s{S_T+3}, s{S_T+3}, s{S_CG}
    s_add_u32 s{S_T+3}, s{S_T+3}, {2047*2048}
    v_cndmask_b32 v{T0}, v{T0}, v{V_LANE}, vcc
    v_lshl_add_u32 v{V_USW}, v{T0}, 3, s{S_T+2}
    v_mov_b32 v{T0}, s{S_T+3}
    v_cndmask_b32 v{T0}, v{T0}, -1, vcc
    buffer_load_ushort v{V_US}, v{T0}, {sr(S_U, 4)}, 0 offen
    v_mov_b32 v{V_US+1}, 0
    ''')

    def pos(dst, n6, extra):
        a(f'''
        v_and_b32 v{T3_}, 1, v{n6}
        v_mad_u32_u24 v{T3_}, v{T3_}, s{S_T+4}, {extra}
        v_lshrrev_b32 v{dst}, 1, v{n6}
        v_lshl_add_u32 v{dst}, v{dst}, 3, v{T3_}
        ''')
    a(f'''
    s_movk_i32 s{S_T+4}, {T1A}
    s_movk_i32 s{S_T+5}, {2*T1A}
    v_mov_b32 v{B0}, s{S_BASE}
    v_add_u32 v{T0}, 13, v{F}
    v_and_b32 v{T1_}, 3, v{T0}
    v_mad_u32_u24 v{T1_}, v{T1_}, s{S_T+5}, v{B0}
    v_lshrrev_b32 v{T0}, 2, v{T0}
    v_lshlrev_b32 v{T2_}, 1, v{G}
    v_sub_u32 v{T0}, v{T0}, v{T2_}
    v_add_u32 v{T2_}, 6, v{T0}
    ''')
    pos(V_K1A, T2_, f'v{T1_}')
    a(f'v_add_u32 v{T2_}, 5, v{T0}')
    pos(V_K1B, T2_, f'v{T1_}')
    a(f'''
    v_lshlrev_b32 v{T0}, 2, v{G}
    v_sub_u32 v{T0}, v{F}, v{T0}
    s_add_u32 s{S_T+2}, s{S_BASE}, {T2 + 96}
    s_add_u32 s{S_T+3}, s{S_BASE}, {T3 + 48}
    v_lshl_add_u32 v{V_K2}, v{T0}, 3, s{S_T+2}
    v_lshl_add_u32 v{V_K3}, v{T0}, 2, s{S_T+3}
    v_lshl_add_u32 v{T0}, v{C}, 1, v{H}
    v_add_u32 v{T2_}, 6, v{T0}
    ''')
    pos(V_WA, T2_, f'v{B0}')
    a(f'v_add_u32 v{T2_}, 7, v{T0}')
    pos(V_WB, T2_, f'v{B0}')
    a(f'''
    v_min_u32 v{T0}, 5, v{C}
    v_sub_u32 v{T0}, 6, v{T0}
    v_min_u32 v{T1_}, 6, v{C}
    v_add_u32 v{T1_}, {129+6}, v{T1_}
    v_cmp_gt_u32 vcc, 32, v{V_LANE}
    s_movk_i32 s{S_T+2}, {128+6}
    v_cndmask_b32 v{T2_}, v{T1_}, v{T0}, vcc
    v_writelane_b32 v{T2_}, s{S_T+2}, 0
    ''')
    pos(V_WA3, T2_, f'v{B0}')
    a(f'v_add_u32 v{T2_}, 1, v{T2_}')
    pos(V_WB3, T2_, f'v{B0}')
    a(f'''
    s_add_u32 s{S_T+2}, s{S_BASE}, {T3 + 60}
    v_lshl_add_u32 v{T0}, v{H}, 7, s{S_T+2}
    v_lshl_add_u32 v{V_T3W}, v{C}, 1, v{T0}
    s_add_u32 s{S_T+2}, s{S_BASE}, {STG}
    s_movk_i32 s{S_T+3}, 144
    v_lshl_add_u32 v{T0}, v{F}, 3, s{S_T+2}
    v_mad_u32_u24 v{V_SW}, v{G}, s{S_T+3}, v{T0}
    s_and_b32 s{S_T+5}, s{S_WAVE}, 3
    s_lshl_b32 s{S_T+6}, s{S_T+5}, 5
    s_add_u32 s{S_T+6}, s{S_T+6}, {STG}
    v_lshl_add_u32 v{T0}, v{G}, 3, s{S_T+6}
    v_and_b32 v{T1_}, 3, v{F}
    v_mad_u32_u24 v{T0}, v{T1_}, s{S_T+3}, v{T0}
    v_lshrrev_b32 v{T1_}, 2, v{F}
    s_movk_i32 s{S_T+3}, {RS}
    v_mad_u32_u24 v{V_SR}, v{T1_}, s{S_T+3}, v{T0}
    s_lshl_b32 s{S_T+5}, s{S_T+5}, 17
    s_add_u32 s{S_T+5}, s{S_T+5}, s{S_CG}
    v_lshl_add_u32 v{V_OUT}, v{V_LANE}, 11, s{S_T+5}
    v_lshlrev_b32 v{T0}, 4, v{V_LANE}
    v_add_u32 v{T0}, {BAND}, v{T0}
    ''')
    a.barrier()
    for k in range(7):
        a(f'ds_read_b128 {vr(V_BAND+4*k, 4)}, v{T0} offset:{1024*k}')
    stamp(a)

    DT = V_CC + 4
    a(f'''
    v_lshlrev_b32 v{DT}, 16, v{V_PAR+6}
    v_mul_f32 v{DT}, 0x3fb8aa3b, v{DT}
    v_exp_f32 v{DT}, v{DT}
    v_cvt_pk_bf16_f32 v{DT}, v{DT}, v{DT}
    v_lshlrev_b32 v{DT}, 16, v{DT}
    v_mul_f32 v{V_CC}, 0x3fb8aa3b, v{DT}
    v_mul_f32 v{V_CC+1}, 0.15915494, v{DT}
    v_mul_f32 v{V_CC+2}, 0x43800000, v{V_CC}
    v_mul_f32 v{V_CC+3}, 0x43800000, v{V_CC+1}
    ''')
    stamp(a)

    names = ['z', 'z2', 'B', 'C', 'E1', 'E2', 'E4', 'E8', 'EH', 'P0', 'P1', 'P2', 'P3', 'P4', 'P5', 'P6', 'P7', 'P8',
             'Q0', 'Q1', 'Q2', 'Q3', 'M', 't0', 't1', 't2', 't3', 't4']
    R = {n: V_W + 2 * k for k, n in enumerate(names)}
    assert V_W + 2 * len(names) <= V_FR
    cv = [V_TMP + k for k in range(8)]
    cvi = [0]

    def p(n):
        return vr(R[n], 2)

    def cmuls(lst):
        for k, (d, x, y) in enumerate(lst):
            a(f'v_pk_mul_f32 {p("t%d" % k)}, {p(x)}, {p(y)} op_sel_hi:[1,0]')
        for k, (d, x, y) in enumerate(lst):
            a(f'v_pk_fma_f32 {p(d)}, {p(x)}, {p(y)}, {p("t%d" % k)} op_sel:[1,1,0] op_sel_hi:[0,1,1] neg_lo:[1,0,0]')

    def put(n, row, neg):
        c = cv[cvi[0] % len(cv)]
        cvi[0] += 1
        a(f'v_cvt_pk_bf16_f32 v{c}, v{R[n]}, {"-" if neg else ""}v{R[n]+1}')
        a(f'ds_write_addtid_b32 v{c} offset:{row*ROW}')

    def putx(n, x):
        put(n, 32 + XROW[x], True)

    def puty(n, y):
        put(n, y // 8, False)

    def transpose_u():
        for q in range(4):
            for hi_ in range(2):
                sel = S_SELHI if hi_ else S_SELLO
                t = V_TMP + 8 + 2 * ((2 * q + hi_) % 4)
                a(f'v_perm_b32 v{t}, v{V_URAW+4+q}, v{V_URAW+q}, s{sel}')
                a(f'v_perm_b32 v{t+1}, v{V_URAW+12+q}, v{V_URAW+8+q}, s{sel}')
                a(f'ds_write_b64 v{V_UW}, {vr(t, 2)} offset:{(2*q+hi_)*US}')
        a(f'ds_write_b64 v{V_USW}, {vr(V_US, 2)}')

    for ps in range(2):
        a.comment(f'---- K-gen pass {ps} ----')
        for k, (n, o) in enumerate([('z', 0), ('z', 1), ('B', 0), ('B', 1), ('C', 0), ('C', 1)]):
            if ps == 0:
                a(f'v_lshlrev_b32 v{R[n]+o}, 16, v{V_PAR+k}')
            else:
                a(f'v_and_b32 v{R[n]+o}, s{S_HIMASK}, v{V_PAR+k}')
        if ps == 0:
            a(f'v_lshlrev_b32 v{V_DSK}, 16, v{V_PAR+7}')
            a(f'v_cndmask_b32 v{V_DSK}, 0, v{V_DSK}, {sr(S_L0, 2)}')
            uload(2)
        a(f'''
        v_pk_mul_f32 {p('z2')}, {p('z')}, {vr(V_CC+2, 2)}
        v_pk_mul_f32 {p('z')}, {p('z')}, {vr(V_CC, 2)}
        v_pk_mul_f32 {p('B')}, {p('B')}, {vr(DT, 2)} op_sel_hi:[1,0]
        v_fract_f32 v{R['z']+1}, v{R['z']+1}
        v_fract_f32 v{R['z2']+1}, v{R['z2']+1}
        v_exp_f32 v{R['z']}, v{R['z']}
        v_cos_f32 v{R['E1']}, v{R['z']+1}
        v_sin_f32 v{R['E1']+1}, v{R['z']+1}
        v_exp_f32 v{R['z2']}, v{R['z2']}
        v_cos_f32 v{R['EH']}, v{R['z2']+1}
        v_sin_f32 v{R['EH']+1}, v{R['z2']+1}
        v_pk_mul_f32 {p('E1')}, {p('E1')}, {p('z')} op_sel_hi:[1,0]
        v_pk_mul_f32 {p('EH')}, {p('EH')}, {p('z2')} op_sel_hi:[1,0]
        ''')
        cmuls([('P0', 'C', 'B'), ('E2', 'E1', 'E1')])
        putx('P0', 0)
        cmuls([('E4', 'E2', 'E2'), ('P1', 'P0', 'E1'), ('P2', 'P0', 'E2')])
        putx('P1', 1); putx('P2', 2)
        cmuls([('Q0', 'E4', 'E4'), ('P3', 'P1', 'E2'), ('P4', 'P0', 'E4'), ('P5', 'P1', 'E4'), ('P6', 'P2', 'E4')])
        puty('Q0', 8); putx('P3', 3); putx('P4', 4); putx('P5', 5); putx('P6', 6)
        cmuls([('Q1', 'Q0', 'Q0'), ('P7', 'P3', 'E4'), ('P8', 'P0', 'Q0'), ('P0', 'P0', 'EH'), ('P2', 'P2', 'EH')])
        puty('Q1', 16); putx('P7', 7); putx('P8', 8); putx('P0', 256); putx('P2', 258)
        cmuls([('Q2', 'Q1', 'Q0'), ('M', 'Q1', 'Q1'), ('P4', 'P4', 'EH'), ('P6', 'P6', 'EH'), ('P8', 'P8', 'EH')])
        puty('Q2', 24); puty('M', 32); putx('P4', 260); putx('P6', 262); putx('P8', 264)
        xs = [[('P0', 512)], [('P4', 516)], [('P8', 520)], [('P4', 772)], [('P8', 776)], [('P8', 1032)], [('P8', 1288)]]
        for st in range(1, 8):
            lst = [('Q0', 'Q0', 'M'), ('Q1', 'Q1', 'M'), ('Q2', 'Q2', 'M')]
            if st < 7:
                lst.append(('Q3', 'M' if st == 1 else 'Q3', 'M'))
            lst += [(n, n, 'EH') for n, _ in xs[st - 1]]
            cmuls(lst)
            puty('Q0', 8 + 32 * st); puty('Q1', 16 + 32 * st); puty('Q2', 24 + 32 * st)
            if st < 7:
                puty('Q3', 32 + 32 * st)
            for n, x in xs[st - 1]:
                putx(n, x)
            if ps == 0 and st == 3:
                uload(3)
        cmuls([('P8', 'P8', 'EH')]); putx('P8', 1544)
        cmuls([('P8', 'P8', 'EH')]); putx('P8', 1800)
        for s in range(8):
            a(f'ds_read_b128 {vr(V_FR+8*s, 4)}, v{V_XR} offset:{32*s}')
            a(f'ds_read_b128 {vr(V_FR+8*s+4, 4)}, v{V_YR} offset:{32*s}')
        if ps == 1:
            transpose_u()
        for s in range(8):
            cin = '0' if (ps == 0 and s == 0) else vr(V_D, 16)
            a(f'v_mfma_f32_32x32x16_bf16 {vr(V_D, 16)}, {vr(V_FR+8*s, 4)}, {vr(V_FR+8*s+4, 4)}, {cin}')
        stamp(a)
    a.barrier()

    a(f's_cmp_eq_u32 s{S_ROLE}, 0')
    a('s_cbranch_scc0 L_role1')
    b = a.fork()
    n0 = stamp_n[0]
    conv(a, 0, opt, stamp)
    finish(a, opt, stamp_n[0])
    stamp_n[0] = n0
    b.label('L_role1')
    conv(b, 1, opt, stamp)
    finish(b, opt, stamp_n[0])
    body = a.text() + b.text()
    return body, a, b


def finish(a, opt, nst):
    if opt.get('stamps'):
        a.wait(vm=0, lgkm=0)
        a.raw(f'    s_memtime {sr(S_STAMP + 2*nst, 2)}')
        a.raw(f'    s_memrealtime {sr(92, 2)}')
        a.raw('    s_waitcnt lgkmcnt(0)')
        a(f'v_mov_b32 v2, 0')
        for k in range(nst + 1):
            a(f's_sub_u32 s{S_T}, s{S_STAMP+2*k}, s{S_STAMP}')
            a(f'v_writelane_b32 v2, s{S_T}, {k}')
        a(f'v_writelane_b32 v2, s90, 14')
        a(f'v_writelane_b32 v2, s92, 15')
        a(f's_lshl_b32 s{S_T}, s2, 3')
        a(f's_add_u32 s{S_T}, s{S_T}, s{S_WAVE}')
        a(f's_lshl_b32 s{S_T}, s{S_T}, 8')
        a(f'v_lshl_add_u32 v3, v{V_LANE}, 2, s{S_T}')
        a(f'global_store_dword v3, v2, s[94:95]')
    a('s_endpgm')


def mf(a, acc, x, y, first=False):
    a(f'v_mfma_f32_16x16x32_bf16 {vr(acc, 4)}, {vr(x, 4)}, {vr(y, 4)}, {"0" if first else vr(acc, 4)}')


def conv(a, role, opt, stamp):
    tiles = [0, 1, 2, 3, 4] if role == 0 else [5, 6, 7]
    uoff = 1024 if role == 0 else 0
    acc = {it: V_ACC + 4 * k for k, it in enumerate(tiles)}
    started = set()

    def accum(it, x, y):
        mf(a, acc[it], x, y, it not in started)
        started.add(it)

    mt2 = sorted({it - d for it in tiles for d in (2, 3, 4) if it - d >= 0})
    mt3 = sorted({it - d for it in tiles for d in (4, 5, 6, 7) if it - d >= 0})
    mts = sorted(set(mt2) | set(mt3))
    d3 = sorted({it - mt for it in tiles for mt in mt3 if 4 <= it - mt <= 7})
    for mt in mts:
        a(f'ds_read_b128 {vr(V_G+4*mt, 4)}, v{V_UF} offset:{uoff + 512*mt}')
    D = V_D
    P0, P1, P2, P3 = V_TMP + 9, V_TMP + 11, V_TMP + 8, V_TMP + 10
    TA, TB, TC = V_TMP + 12, V_TMP + 13, V_TMP + 14
    a(f'''
    ds_write_addtid_b32 v{V_ZERO} offset:{T2}
    ds_write_addtid_b32 v{V_ZERO} offset:{T2+376}
    v_mov_b32 v{TA}, v{D+9}
    v_cvt_pk_bf16_f32 v{TB}, v{D+10}, v{D+11}
    v_add_f32 v{D}, v{D}, v{V_DSK}
    v_mov_b32_dpp v{TA}, v{D+8} wave_shl:1 row_mask:0xf bank_mask:0xf
    ds_write_b16 v{V_T3W}, v{TB}
    ds_write_b16_d16_hi v{V_T3W}, v{TB} offset:64
    v_cvt_pk_bf16_f32 v{TA}, v{D+9}, v{TA}
    v_cvt_pk_bf16_f32 v{TC}, -v{D+9}, v{V_ZERO}
    ds_write_addtid_b32 v{TA} offset:{T2+120}
    v_readlane_b32 s{S_KN}, v{TC}, 63
    ''')
    for k, dl in enumerate((2, 3, 4)):
        for q in range(4):
            a(f'ds_read_b64 {vr(V_K2F+8*k+2*q, 2)}, v{V_K2} offset:{128*k + 8*q}')
    for dl in d3:
        k = dl - 4
        a(f'ds_read2_b32 {vr(V_K3F+4*k, 2)}, v{V_K3} offset0:{16*k} offset1:{16*k+1}')
        a(f'ds_read2_b32 {vr(V_K3F+4*k+2, 2)}, v{V_K3} offset0:{16*k+2} offset1:{16*k+3}')
    KF = V_BAND + 24
    for q in range(4):
        a(f'v_mul_u32_u24 v{KF+q}, s{S_KN}, v{KF+q}')

    def t1_round(wa, wb, off):
        a(f'''
        ds_write_b64 v{wa}, {vr(P2, 2)} offset:{6*T1A + off}
        ds_write_b64 v{wb}, {vr(P3, 2)} offset:{off}
        ds_write_b32 v{wa}, v{P0} offset:{2*T1A + off}
        ds_write_b32 v{wb}, v{P2} offset:{2*T1A + 4 + off}
        ds_write_b32 v{wa}, v{P1} offset:{4*T1A + off}
        ds_write_b32 v{wb}, v{P3} offset:{4*T1A + 4 + off}
        ''')
    a(f'''
    v_cvt_pk_bf16_f32 v{TA}, v{D+12}, v{D+12}
    v_cvt_pk_bf16_f32 v{P2}, v{D+8}, v{D+12}
    v_cvt_pk_bf16_f32 v{P3}, v{D+8}, v{D+8}
    v_cvt_pk_bf16_f32 v{TB}, v{D}, v{V_ZERO}
    v_cndmask_b32 v{P0}, 0, v{TA}, {sr(S_L032, 2)}
    v_cndmask_b32 v{P2}, 0, v{P2}, {sr(S_L0, 2)}
    v_readlane_b32 s{S_T}, v{TB}, 0
    v_and_b32 v{TC}, s{S_HIMASK}, v{P0}
    v_cndmask_b32 v{P3}, 0, v{P3}, {sr(S_L0, 2)}
    v_cndmask_b32 v{P1}, v{TC}, v{P0}, {sr(S_L0, 2)}
    v_writelane_b32 v{P3}, s{S_T}, 1
    ''')
    t1_round(V_WA3, V_WB3, 0)
    a(f'''
    v_cvt_pk_bf16_f32 v{P0}, v{D+1}, v{D}
    v_cvt_pk_bf16_f32 v{P1}, v{D+2}, v{D+1}
    v_cvt_pk_bf16_f32 v{P2}, v{D+3}, v{D+2}
    v_cvt_pk_bf16_f32 v{P3}, v{D+7}, v{D+3}
    ''')
    t1_round(V_WA, V_WB, 0)
    a(f'''
    v_cvt_pk_bf16_f32 v{P0}, v{D+4}, v{D+4}
    v_cvt_pk_bf16_f32 v{P1}, v{D+5}, v{D+4}
    v_cvt_pk_bf16_f32 v{P2}, v{D+6}, v{D+5}
    v_cvt_pk_bf16_f32 v{P3}, v{D+6}, v{D+6}
    ''')
    t1_round(V_WA, V_WB, 256)
    stamp(a)

    wlo = max(8 * tiles[0] - 16, -8)
    whi = 8 * tiles[-1]
    order = []
    for w in range(wlo, whi + 1):
        for it in tiles:
            s = 8 * it - w
            if 0 <= s <= 16 and s not in order:
                order.append(s)
    kd_q = list(order)

    def kd_read(n=1):
        for _ in range(n):
            if kd_q:
                s = kd_q.pop(0)
                a(f'ds_read_b64 {vr(V_KD+4*s, 2)}, v{V_K1A} offset:{32*s}')
                a(f'ds_read_b64 {vr(V_KD+4*s+2, 2)}, v{V_K1B} offset:{32*s}')

    def box(mt):
        if mt in mt2:
            for sg in range(4):
                mf(a, V_RAW + 4 * sg, V_G + 4 * mt, V_BAND + 4 * sg, True)
                kd_read()
        if mt in mt3:
            for sg in range(2):
                mf(a, V_RAW + 16 + 4 * sg, V_G + 4 * mt, V_BAND + 16 + 4 * sg, True)
                kd_read()

    def cvts(mt):
        pk = V_PK + 12 * (mts.index(mt) % 2)
        out = []
        if mt in mt2:
            for fr in range(2):
                for jj in range(2):
                    j = 3 - 2 * fr - jj
                    out.append(f'v_cvt_pk_bf16_f32 v{pk+4*fr+2*jj}, v{V_RAW+j}, v{V_RAW+4+j}')
                    out.append(f'v_cvt_pk_bf16_f32 v{pk+4*fr+2*jj+1}, v{V_RAW+8+j}, v{V_RAW+12+j}')
        if mt in mt3:
            for jj in range(4):
                out.append(f'v_cvt_pk_bf16_f32 v{pk+8+jj}, v{V_RAW+16+3-jj}, v{V_RAW+20+3-jj}')
        return out

    def dil(mt):
        pk = V_PK + 12 * (mts.index(mt) % 2)
        out = []
        for it in tiles:
            dl = it - mt
            if mt in mt2 and 2 <= dl <= 4:
                out.append((it, pk, V_K2F + 8 * (dl - 2)))
                out.append((it, pk + 4, V_K2F + 8 * (dl - 2) + 4))
            if mt in mt3 and 4 <= dl <= 7:
                out.append((it, pk + 8, V_K3F + 4 * (dl - 4)))
            if dl == 4:
                out.append((it, KF, V_G + 4 * mt))
        return out

    prev = None
    for mt in mts + [None]:
        if mt is not None:
            box(mt)
        cq = cvts(mt) if mt is not None else []
        dq = dil(prev) if prev is not None else []
        for k, (it, x, y) in enumerate(dq):
            accum(it, x, y)
            kd_read()
            if k >= 2:
                for _ in range(2):
                    if cq:
                        a(cq.pop(0))
        for c in cq:
            a(c)
        prev = mt
    kd_read(17)
    stamp(a)

    NF = 6
    ring = [V_RAW + 4 * k for k in range(NF)]
    ws = list(range(wlo, whi + 1))

    def fread(w):
        a(f'ds_read_b128 {vr(ring[(w - wlo) % NF], 4)}, v{V_UF} offset:{uoff + 64*w + 16}')
    LOOK = 4
    for w in ws[:LOOK]:
        fread(w)
    pend = []
    OUTR = V_G

    def stage(it):
        slot = tiles.index(it)
        t = V_G + 8 + 2 * (slot % 2)
        a(f'v_cvt_pk_bf16_f32 v{t}, v{acc[it]}, v{acc[it]+1}')
        a(f'v_cvt_pk_bf16_f32 v{t+1}, v{acc[it]+2}, v{acc[it]+3}')
        a(f'ds_write_b64 v{V_SW}, {vr(t, 2)} offset:{576*slot}')

    def store(it):
        slot = tiles.index(it)
        lab = f'L_st{role}_{it}'
        a.barrier()
        a(f's_cmp_{"ge" if slot % 2 == 0 else "lt"}_u32 s{S_WAVE}, 4')
        a(f's_mov_b32 s{S_TILE}, {it*524288}')
        a(f's_cbranch_scc1 {lab}')
        o = OUTR + 4 * (slot % 2)
        a.raw(f'    ds_read_b64_tr_b16 {vr(o, 2)}, v{V_SR} offset:{576*slot}')
        a.raw(f'    ds_read_b64_tr_b16 {vr(o+2, 2)}, v{V_SR} offset:{576*slot + 4*RS}')
        a.raw(f'    s_waitcnt lgkmcnt(0)')
        a.raw(f'    buffer_store_dwordx4 {vr(o, 4)}, v{V_OUT}, {sr(S_OUT, 4)}, s{S_TILE} offen')
        a.label(lab)

    for w in ws:
        if w + LOOK <= whi:
            fread(w + LOOK)
        for it in tiles:
            s = 8 * it - w
            if 0 <= s <= 16:
                accum(it, V_KD + 4 * s, ring[(w - wlo) % NF])
                pend = [(c - 1, f) for c, f in pend]
                while pend and pend[0][0] <= 0:
                    pend.pop(0)[1]()
                if s == 0:
                    pend.append((4, lambda it=it: stage(it)))
                    pend.append((7, lambda it=it: store(it)))
    for c, f in pend:
        f()


HEADER = open('standalone__ssm_conv_s4__prompt.s.ref').read().split('; Override launch')[0]


def build(opt):
    body, a, b = gen(opt)
    s = HEADER
    s += f'; @launch grid=(256,1,1) block=(512,1,1) lds={LDS_BYTES}\n'
    s += '.amdgcn_target "amdgcn-amd-amdhsa--gfx950"\n.text\n'
    s += f'.globl {KNAME}\n.p2align 8\n.type {KNAME},@function\n{KNAME}:\n'
    s += body
    s += 'L_end:\n    s_endpgm\n'
    s += f'.set CODE_LAST, L_end - {KNAME} - 64\n'
    s += f'''.section .rodata,"a"
.p2align 6
.amdhsa_kernel {KNAME}
  .amdhsa_next_free_vgpr 256
  .amdhsa_next_free_sgpr 102
  .amdhsa_accum_offset 256
  .amdhsa_group_segment_fixed_size 0
  .amdhsa_kernarg_size 96
  .amdhsa_user_sgpr_count 2
  .amdhsa_user_sgpr_kernarg_segment_ptr 1
  .amdhsa_system_sgpr_workgroup_id_x 1
.end_amdhsa_kernel
'''
    return s, a, b


if __name__ == '__main__':
    out = sys.argv[1]
    opt = {}
    for kv in sys.argv[2:]:
        k, v = kv.split('=')
        opt[k] = int(v)
    s, a, b = build(opt)
    open(out, 'w').write(s)
    print('role0+common', a.stats, 'nops', a.nops, '| role1', b.stats, 'nops', b.nops)
```

```python
import sys
from asmlib import Asm, vr, sr

KNAME = 'standalone__ssm_conv_s4__prompt_kernel'

RS = 15040
ROW = 272
UT = 8 * RS
US = 4144
BAND = UT + 8 * US
LDS_BYTES = BAND + 8 * 1024
T1A = 608
T2 = 8 * T1A
T3 = T2 + 504
STG = 5696
assert T3 + 320 <= STG and STG + 5 * 576 <= RS and LDS_BYTES <= 163840

XROW = {0: 0, 1: 1, 2: 2, 3: 3, 4: 4, 5: 5, 6: 6, 7: 7, 256: 8, 258: 9, 260: 10, 1800: 11, 512: 12, 262: 13, 264: 14, 8: 15,
        516: 16, 520: 17, 1032: 18, 1288: 19, 772: 20, 776: 21, 1544: 22}

S_U, S_OUT = 24, 28
S_WAVE, S_ROLE, S_CG, S_BASE, S_PB = 32, 33, 34, 35, 36
S_T = 38
S_SELLO, S_SELHI, S_4096, S_HIMASK = 48, 49, 50, 51
S_L0, S_L032 = 52, 54
S_TILE = 56
S_KN = 57
S_STAMP = 60

(V_LANE, V_YR, V_XR, V_UF, V_UW, V_K1A, V_K1B, V_K2, V_K3, V_WA, V_WB, V_WA3, V_WB3, V_T3W, V_SW, V_SR, V_OUT,
 V_UL0, V_UL1, V_USW, V_DSK, V_ZERO) = range(1, 23)
V_US = 24
V_BAND = 28
V_ACC = 56
V_KD = 76
V_K2F = 144
V_K3F = 168
V_G = 184
V_RAW = 208
V_PK = 232
V_URAW = 56
V_PAR = 72
V_CC = 80
V_W = 86
V_FR = 144
V_D = 208
V_TMP = 224


def gen(opt):
    a = Asm()
    stamp_n = [0]

    def stamp(a):
        if opt.get('stamps'):
            a.raw(f'    s_memtime {sr(S_STAMP + 2*stamp_n[0], 2)}')
            a.smem.append('?')
            stamp_n[0] += 1

    if opt.get('stamps') or opt.get('spin') or opt.get('amp'):
        a.raw(f'    s_memrealtime {sr(90, 2)}')
    stamp(a)
    a(f's_load_dwordx16 s[4:19], s[0:1], 0')
    a(f's_load_dwordx4 s[20:23], s[0:1], 64')
    if opt.get('stamps'):
        a(f's_load_dwordx2 s[94:95], s[0:1], 88')
    a('s_cmp_ge_u32 s2, 256')
    a('s_cbranch_scc1 L_end')
    if opt.get('prefetch', 1):
        a(f's_getpc_b64 {sr(S_T, 2)}')
        a(f'v_lshlrev_b32 v{V_TMP}, 7, v0')
        a(f'v_min_u32 v{V_TMP}, CODE_LAST, v{V_TMP}')
        a(f'v_readfirstlane_b32 s{S_WAVE}, v0')
        a(f's_cmp_ge_u32 s{S_WAVE}, 128')
        a('s_cbranch_scc1 L_nopf')
        a.raw(f'    global_load_dword v{V_TMP+1}, v{V_TMP}, {sr(S_T, 2)}')
        a.label('L_nopf')
        a.vm.append([f'v{V_TMP+1}'])
    else:
        a(f'v_readfirstlane_b32 s{S_WAVE}, v0')
    a(f'''
    v_and_b32 v{V_LANE}, 63, v0
    s_lshr_b32 s{S_WAVE}, s{S_WAVE}, 6
    s_and_b32 s{S_T+2}, s2, 7
    s_lshr_b32 s{S_T+3}, s2, 3
    s_lshr_b32 s{S_ROLE}, s{S_T+3}, 4
    s_and_b32 s{S_T+4}, s{S_T+3}, 15
    s_lshl_b32 s{S_T+2}, s{S_T+2}, 4
    s_add_u32 s{S_T+2}, s{S_T+2}, s{S_T+4}
    s_lshl_b32 s{S_CG}, s{S_T+2}, 4
    s_lshl_b32 s{S_T+2}, s{S_T+2}, 3
    s_add_u32 s{S_T+2}, s{S_T+2}, s{S_WAVE}
    s_lshl_b32 s{S_T+4}, s{S_T+2}, 8
    s_lshl_b32 s{S_T+2}, s{S_T+2}, 1
    v_lshl_add_u32 v{V_TMP+2}, v{V_LANE}, 2, s{S_T+4}
    v_mov_b32 v{V_TMP+3}, s{S_T+2}
    s_add_u32 s{S_PB}, s{S_WAVE}, s{S_T+3}
    s_and_b32 s{S_PB}, s{S_PB}, 7
    s_mov_b32 s{S_U+3}, 0x00020000
    s_mov_b32 s{S_OUT+3}, 0x00020000
    s_mov_b32 s{S_OUT+2}, 4194304
    s_cmp_eq_u32 s{S_ROLE}, 0
    s_cselect_b32 s{S_U+2}, {1280*2048}, s{S_OUT+2}
    s_cselect_b32 s{S_T+5}, 512, 0
    s_lshl_b32 s{S_T+6}, s{S_PB}, 8
    s_sub_u32 s{S_T+6}, s{S_T+6}, s{S_T+5}
    s_lshl_b32 s{S_T+6}, s{S_T+6}, 11
    s_add_u32 s{S_T+6}, s{S_T+6}, s{S_CG}
    v_lshl_add_u32 v{V_UL1}, v{V_LANE}, 13, s{S_T+6}
    v_add_u32 v{V_UL0}, 0xfffff800, v{V_UL1}
    s_movk_i32 s{S_4096}, 4096
    ''')
    a(f'global_load_ushort v{V_PAR+6}, v{V_TMP+3}, s[18:19]')
    for k in range(6):
        a(f'global_load_dword v{V_PAR+k}, v{V_TMP+2}, s[{6+2*k}:{7+2*k}]')
    a(f'global_load_ushort v{V_PAR+7}, v{V_TMP+3}, s[20:21]')
    a(f'''
    s_mov_b32 s{S_U}, s4
    s_mov_b32 s{S_U+1}, s5
    s_mov_b32 s{S_OUT}, s22
    s_mov_b32 s{S_OUT+1}, s23
    ''')

    def uload(k):
        if k == 0:
            a(f'buffer_load_dwordx4 {vr(V_URAW, 4)}, v{V_UL0}, {sr(S_U, 4)}, 0 offen')
        elif k == 1:
            a(f'buffer_load_dwordx4 {vr(V_URAW+4, 4)}, v{V_UL1}, {sr(S_U, 4)}, 0 offen')
        elif k == 2:
            a(f'buffer_load_dwordx4 {vr(V_URAW+8, 4)}, v{V_UL1}, {sr(S_U, 4)}, 0 offen offset:2048')
        else:
            a(f'buffer_load_dwordx4 {vr(V_URAW+12, 4)}, v{V_UL1}, {sr(S_U, 4)}, s{S_4096} offen')
    uload(0)
    uload(1)
    stamp(a)

    C, H, F, G, T0, T1_, T2_, T3_ = range(V_TMP + 4, V_TMP + 12)
    a(f'''
    s_mul_i32 s{S_BASE}, s{S_WAVE}, {RS}
    s_mov_b32 m0, s{S_BASE}
    v_and_b32 v{C}, 31, v{V_LANE}
    v_lshrrev_b32 v{H}, 5, v{V_LANE}
    v_and_b32 v{F}, 15, v{V_LANE}
    v_lshrrev_b32 v{G}, 4, v{V_LANE}
    v_mov_b32 v{V_ZERO}, 0
    s_mov_b32 s{S_SELLO}, 0x05040100
    s_mov_b32 s{S_SELHI}, 0x07060302
    s_mov_b32 s{S_HIMASK}, 0xffff0000
    s_mov_b64 {sr(S_L0, 2)}, 1
    s_mov_b32 s{S_L032}, 1
    s_mov_b32 s{S_L032+1}, 1
    ''')
    lo = [6, 11, 14, 19, 5, 12, 5, 5]
    hi = [11, 14, 19, 22, 12, 21, 6, 6]
    pk_lo = sum(v << (8 * k) for k, v in enumerate(lo))
    pk_hi = sum(v << (8 * k) for k, v in enumerate(hi))
    B0 = V_TMP + 12
    a(f'''
    s_lshl_b32 s{S_T+2}, s{S_WAVE}, 3
    s_mov_b32 s{S_T+4}, {pk_lo & 0xffffffff}
    s_mov_b32 s{S_T+5}, {pk_lo >> 32}
    s_mov_b32 s{S_T+6}, {pk_hi & 0xffffffff}
    s_mov_b32 s{S_T+7}, {pk_hi >> 32}
    s_lshr_b64 {sr(S_T+4, 2)}, {sr(S_T+4, 2)}, s{S_T+2}
    s_lshr_b64 {sr(S_T+6, 2)}, {sr(S_T+6, 2)}, s{S_T+2}
    s_and_b32 s{S_T+4}, s{S_T+4}, 255
    s_and_b32 s{S_T+6}, s{S_T+6}, 255
    s_mov_b32 s{S_T+8}, 0x7f7f7f7f
    s_cmp_ge_u32 s{S_WAVE}, 6
    s_cselect_b32 s{S_T+8}, 0x01010101, s{S_T+8}
    s_cselect_b32 s{S_T+3}, 8, 1
    s_mov_b32 s{S_T+9}, s{S_T+8}
    v_lshlrev_b32 v{T0}, 3, v{G}
    v_sub_u32 v{T0}, v{T0}, v{F}
    v_add_u32 v{T0}, -14, v{T0}
    v_add_lshl_u32 v{T1_}, v{T0}, s{S_T+4}, 3
    v_add_lshl_u32 v{T2_}, v{T0}, s{S_T+6}, 3
    v_med3_i32 v{T1_}, v{T1_}, 0, 63
    v_med3_i32 v{T2_}, v{T2_}, 0, 63
    v_lshrrev_b64 {vr(B0, 2)}, v{T1_}, {sr(S_T+8, 2)}
    v_lshrrev_b64 {vr(B0+2, 2)}, v{T2_}, {sr(S_T+8, 2)}
    s_mov_b32 s{S_T+4}, 0x010c000c
    s_mov_b32 s{S_T+5}, 0x030c020c
    v_xor_b32 v{B0}, v{B0}, v{B0+2}
    v_xor_b32 v{B0+1}, v{B0+1}, v{B0+3}
    v_perm_b32 v{B0+4}, v{B0}, v{B0}, s{S_T+4}
    v_perm_b32 v{B0+5}, v{B0}, v{B0}, s{S_T+5}
    v_perm_b32 v{B0+6}, v{B0+1}, v{B0+1}, s{S_T+4}
    v_perm_b32 v{B0+7}, v{B0+1}, v{B0+1}, s{S_T+5}
    v_lshrrev_b32 v{B0+4}, s{S_T+3}, v{B0+4}
    v_lshrrev_b32 v{B0+5}, s{S_T+3}, v{B0+5}
    v_lshrrev_b32 v{B0+6}, s{S_T+3}, v{B0+6}
    v_lshrrev_b32 v{B0+7}, s{S_T+3}, v{B0+7}
    v_lshlrev_b32 v{T3_}, 4, v0
    v_add_u32 v{T3_}, {BAND}, v{T3_}
    ds_write_b128 v{T3_}, {vr(B0+4, 4)}
    v_mov_b32 v{T1_}, 0x3f80
    ds_write_addtid_b32 v{T1_} offset:0
    ''')
    a(f'''
    s_movk_i32 s{S_T+2}, {ROW}
    v_lshl_add_u32 v{T0}, v{H}, 4, s{S_BASE}
    v_mad_u32_u24 v{V_YR}, v{C}, s{S_T+2}, v{T0}
    v_add_u32 v{T1_}, -12, v{C}
    v_cmp_gt_u32 vcc, 24, v{C}
    v_add_u32 v{T0}, {32*ROW}, v{T0}
    v_cndmask_b32 v{T1_}, v{T1_}, v{C}, vcc
    v_writelane_b32 v{T1_}, 4, 11
    v_writelane_b32 v{T1_}, 4, 43
    v_writelane_b32 v{T1_}, 10, 12
    v_writelane_b32 v{T1_}, 10, 44
    v_writelane_b32 v{T1_}, 11, 23
    v_writelane_b32 v{T1_}, 11, 55
    v_mad_u32_u24 v{V_XR}, v{T1_}, s{S_T+2}, v{T0}
    ''')
    a(f'''
    s_mul_i32 s{S_T+2}, s{S_WAVE}, {US}
    s_add_u32 s{S_T+2}, s{S_T+2}, {UT}
    v_lshl_add_u32 v{T0}, v{F}, 5, s{S_T+2}
    v_lshl_add_u32 v{V_UF}, v{G}, 4, v{T0}
    s_lshl_b32 s{S_T+3}, s{S_PB}, 9
    s_add_u32 s{S_T+3}, s{S_T+3}, {UT+40}
    v_lshl_add_u32 v{V_UW}, v{V_LANE}, 3, s{S_T+3}
    v_cmp_gt_u32 vcc, 5, v{V_LANE}
    v_mov_b32 v{T0}, {4136//8}
    s_lshl_b32 s{S_T+3}, s{S_WAVE}, 1
    s_add_u32 s{S_T+3}, s{S_T+3}, s{S_CG}
    s_add_u32 s{S_T+3}, s{S_T+3}, {2047*2048}
    v_cndmask_b32 v{T0}, v{T0}, v{V_LANE}, vcc
    v_lshl_add_u32 v{V_USW}, v{T0}, 3, s{S_T+2}
    v_mov_b32 v{T0}, s{S_T+3}
    v_cndmask_b32 v{T0}, v{T0}, -1, vcc
    buffer_load_ushort v{V_US}, v{T0}, {sr(S_U, 4)}, 0 offen
    v_mov_b32 v{V_US+1}, 0
    ''')

    def pos(dst, n6, extra):
        a(f'''
        v_and_b32 v{T3_}, 1, v{n6}
        v_mad_u32_u24 v{T3_}, v{T3_}, s{S_T+4}, {extra}
        v_lshrrev_b32 v{dst}, 1, v{n6}
        v_lshl_add_u32 v{dst}, v{dst}, 3, v{T3_}
        ''')
    a(f'''
    s_movk_i32 s{S_T+4}, {T1A}
    s_movk_i32 s{S_T+5}, {2*T1A}
    v_mov_b32 v{B0}, s{S_BASE}
    v_add_u32 v{T0}, 13, v{F}
    v_and_b32 v{T1_}, 3, v{T0}
    v_mad_u32_u24 v{T1_}, v{T1_}, s{S_T+5}, v{B0}
    v_lshrrev_b32 v{T0}, 2, v{T0}
    v_lshlrev_b32 v{T2_}, 1, v{G}
    v_sub_u32 v{T0}, v{T0}, v{T2_}
    v_add_u32 v{T2_}, 6, v{T0}
    ''')
    pos(V_K1A, T2_, f'v{T1_}')
    a(f'v_add_u32 v{T2_}, 5, v{T0}')
    pos(V_K1B, T2_, f'v{T1_}')
    a(f'''
    v_lshlrev_b32 v{T0}, 2, v{G}
    v_sub_u32 v{T0}, v{F}, v{T0}
    s_add_u32 s{S_T+2}, s{S_BASE}, {T2 + 96}
    s_add_u32 s{S_T+3}, s{S_BASE}, {T3 + 48}
    v_lshl_add_u32 v{V_K2}, v{T0}, 3, s{S_T+2}
    v_lshl_add_u32 v{V_K3}, v{T0}, 2, s{S_T+3}
    v_lshl_add_u32 v{T0}, v{C}, 1, v{H}
    v_add_u32 v{T2_}, 6, v{T0}
    ''')
    pos(V_WA, T2_, f'v{B0}')
    a(f'v_add_u32 v{T2_}, 7, v{T0}')
    pos(V_WB, T2_, f'v{B0}')
    a(f'''
    v_min_u32 v{T0}, 5, v{C}
    v_sub_u32 v{T0}, 6, v{T0}
    v_min_u32 v{T1_}, 6, v{C}
    v_add_u32 v{T1_}, {129+6}, v{T1_}
    v_cmp_gt_u32 vcc, 32, v{V_LANE}
    s_movk_i32 s{S_T+2}, {128+6}
    v_cndmask_b32 v{T2_}, v{T1_}, v{T0}, vcc
    v_writelane_b32 v{T2_}, s{S_T+2}, 0
    ''')
    pos(V_WA3, T2_, f'v{B0}')
    a(f'v_add_u32 v{T2_}, 1, v{T2_}')
    pos(V_WB3, T2_, f'v{B0}')
    a(f'''
    s_add_u32 s{S_T+2}, s{S_BASE}, {T3 + 60}
    v_lshl_add_u32 v{T0}, v{H}, 7, s{S_T+2}
    v_lshl_add_u32 v{V_T3W}, v{C}, 1, v{T0}
    s_add_u32 s{S_T+2}, s{S_BASE}, {STG}
    s_movk_i32 s{S_T+3}, 144
    v_lshl_add_u32 v{T0}, v{F}, 3, s{S_T+2}
    v_mad_u32_u24 v{V_SW}, v{G}, s{S_T+3}, v{T0}
    s_and_b32 s{S_T+5}, s{S_WAVE}, 3
    s_lshl_b32 s{S_T+6}, s{S_T+5}, 5
    s_add_u32 s{S_T+6}, s{S_T+6}, {STG}
    v_lshl_add_u32 v{T0}, v{G}, 3, s{S_T+6}
    v_and_b32 v{T1_}, 3, v{F}
    v_mad_u32_u24 v{T0}, v{T1_}, s{S_T+3}, v{T0}
    v_lshrrev_b32 v{T1_}, 2, v{F}
    s_movk_i32 s{S_T+3}, {RS}
    v_mad_u32_u24 v{V_SR}, v{T1_}, s{S_T+3}, v{T0}
    s_lshl_b32 s{S_T+5}, s{S_T+5}, 17
    s_add_u32 s{S_T+5}, s{S_T+5}, s{S_CG}
    v_lshl_add_u32 v{V_OUT}, v{V_LANE}, 11, s{S_T+5}
    v_lshlrev_b32 v{T0}, 4, v{V_LANE}
    v_add_u32 v{T0}, {BAND}, v{T0}
    ''')
    a.barrier()
    for k in range(7):
        a(f'ds_read_b128 {vr(V_BAND+4*k, 4)}, v{T0} offset:{1024*k}')
    stamp(a)

    DT = V_CC + 4
    a(f'''
    v_lshlrev_b32 v{DT}, 16, v{V_PAR+6}
    v_mul_f32 v{DT}, 0x3fb8aa3b, v{DT}
    v_exp_f32 v{DT}, v{DT}
    v_cvt_pk_bf16_f32 v{DT}, v{DT}, v{DT}
    v_lshlrev_b32 v{DT}, 16, v{DT}
    v_mul_f32 v{V_CC}, 0x3fb8aa3b, v{DT}
    v_mul_f32 v{V_CC+1}, 0.15915494, v{DT}
    v_mul_f32 v{V_CC+2}, 0x43800000, v{V_CC}
    v_mul_f32 v{V_CC+3}, 0x43800000, v{V_CC+1}
    ''')
    stamp(a)

    names = ['z', 'z2', 'B', 'C', 'E1', 'E2', 'E4', 'E8', 'EH', 'P0', 'P1', 'P2', 'P3', 'P4', 'P5', 'P6', 'P7', 'P8',
             'Q0', 'Q1', 'Q2', 'Q3', 'M', 't0', 't1', 't2', 't3', 't4']
    R = {n: V_W + 2 * k for k, n in enumerate(names)}
    assert V_W + 2 * len(names) <= V_FR
    cv = [V_TMP + k for k in range(8)]
    cvi = [0]

    def p(n):
        return vr(R[n], 2)

    def cmuls(lst):
        for k, (d, x, y) in enumerate(lst):
            a(f'v_pk_mul_f32 {p("t%d" % k)}, {p(x)}, {p(y)} op_sel_hi:[1,0]')
        for k, (d, x, y) in enumerate(lst):
            a(f'v_pk_fma_f32 {p(d)}, {p(x)}, {p(y)}, {p("t%d" % k)} op_sel:[1,1,0] op_sel_hi:[0,1,1] neg_lo:[1,0,0]')

    def put(n, row, neg):
        c = cv[cvi[0] % len(cv)]
        cvi[0] += 1
        a(f'v_cvt_pk_bf16_f32 v{c}, v{R[n]}, {"-" if neg else ""}v{R[n]+1}')
        a(f'ds_write_addtid_b32 v{c} offset:{row*ROW}')

    def putx(n, x):
        put(n, 32 + XROW[x], True)

    def puty(n, y):
        put(n, y // 8, False)

    def transpose_u():
        for q in range(4):
            for hi_ in range(2):
                sel = S_SELHI if hi_ else S_SELLO
                t = V_TMP + 8 + 2 * ((2 * q + hi_) % 4)
                a(f'v_perm_b32 v{t}, v{V_URAW+4+q}, v{V_URAW+q}, s{sel}')
                a(f'v_perm_b32 v{t+1}, v{V_URAW+12+q}, v{V_URAW+8+q}, s{sel}')
                a(f'ds_write_b64 v{V_UW}, {vr(t, 2)} offset:{(2*q+hi_)*US}')
        a(f'ds_write_b64 v{V_USW}, {vr(V_US, 2)}')

    for ps in range(2):
        a.comment(f'---- K-gen pass {ps} ----')
        for k, (n, o) in enumerate([('z', 0), ('z', 1), ('B', 0), ('B', 1), ('C', 0), ('C', 1)]):
            if ps == 0:
                a(f'v_lshlrev_b32 v{R[n]+o}, 16, v{V_PAR+k}')
            else:
                a(f'v_and_b32 v{R[n]+o}, s{S_HIMASK}, v{V_PAR+k}')
        if ps == 0:
            a(f'v_lshlrev_b32 v{V_DSK}, 16, v{V_PAR+7}')
            a(f'v_cndmask_b32 v{V_DSK}, 0, v{V_DSK}, {sr(S_L0, 2)}')
            uload(2)
        a(f'''
        v_pk_mul_f32 {p('z2')}, {p('z')}, {vr(V_CC+2, 2)}
        v_pk_mul_f32 {p('z')}, {p('z')}, {vr(V_CC, 2)}
        v_pk_mul_f32 {p('B')}, {p('B')}, {vr(DT, 2)} op_sel_hi:[1,0]
        v_fract_f32 v{R['z']+1}, v{R['z']+1}
        v_fract_f32 v{R['z2']+1}, v{R['z2']+1}
        v_exp_f32 v{R['z']}, v{R['z']}
        v_cos_f32 v{R['E1']}, v{R['z']+1}
        v_sin_f32 v{R['E1']+1}, v{R['z']+1}
        v_exp_f32 v{R['z2']}, v{R['z2']}
        v_cos_f32 v{R['EH']}, v{R['z2']+1}
        v_sin_f32 v{R['EH']+1}, v{R['z2']+1}
        v_pk_mul_f32 {p('E1')}, {p('E1')}, {p('z')} op_sel_hi:[1,0]
        v_pk_mul_f32 {p('EH')}, {p('EH')}, {p('z2')} op_sel_hi:[1,0]
        ''')
        cmuls([('P0', 'C', 'B'), ('E2', 'E1', 'E1')])
        putx('P0', 0)
        cmuls([('E4', 'E2', 'E2'), ('P1', 'P0', 'E1'), ('P2', 'P0', 'E2')])
        putx('P1', 1); putx('P2', 2)
        cmuls([('Q0', 'E4', 'E4'), ('P3', 'P1', 'E2'), ('P4', 'P0', 'E4'), ('P5', 'P1', 'E4'), ('P6', 'P2', 'E4')])
        puty('Q0', 8); putx('P3', 3); putx('P4', 4); putx('P5', 5); putx('P6', 6)
        cmuls([('Q1', 'Q0', 'Q0'), ('P7', 'P3', 'E4'), ('P8', 'P0', 'Q0'), ('P0', 'P0', 'EH'), ('P2', 'P2', 'EH')])
        puty('Q1', 16); putx('P7', 7); putx('P8', 8); putx('P0', 256); putx('P2', 258)
        cmuls([('Q2', 'Q1', 'Q0'), ('M', 'Q1', 'Q1'), ('P4', 'P4', 'EH'), ('P6', 'P6', 'EH'), ('P8', 'P8', 'EH')])
        puty('Q2', 24); puty('M', 32); putx('P4', 260); putx('P6', 262); putx('P8', 264)
        xs = [[('P0', 512)], [('P4', 516)], [('P8', 520)], [('P4', 772)], [('P8', 776)], [('P8', 1032)], [('P8', 1288)]]
        for st in range(1, 8):
            lst = [('Q0', 'Q0', 'M'), ('Q1', 'Q1', 'M'), ('Q2', 'Q2', 'M')]
            if st < 7:
                lst.append(('Q3', 'M' if st == 1 else 'Q3', 'M'))
            lst += [(n, n, 'EH') for n, _ in xs[st - 1]]
            cmuls(lst)
            puty('Q0', 8 + 32 * st); puty('Q1', 16 + 32 * st); puty('Q2', 24 + 32 * st)
            if st < 7:
                puty('Q3', 32 + 32 * st)
            for n, x in xs[st - 1]:
                putx(n, x)
            if ps == 0 and st == 3:
                uload(3)
        cmuls([('P8', 'P8', 'EH')]); putx('P8', 1544)
        cmuls([('P8', 'P8', 'EH')]); putx('P8', 1800)
        for s in range(8):
            a(f'ds_read_b128 {vr(V_FR+8*s, 4)}, v{V_XR} offset:{32*s}')
            a(f'ds_read_b128 {vr(V_FR+8*s+4, 4)}, v{V_YR} offset:{32*s}')
        if ps == 1:
            transpose_u()
        for s in range(8):
            cin = '0' if (ps == 0 and s == 0) else vr(V_D, 16)
            a(f'v_mfma_f32_32x32x16_bf16 {vr(V_D, 16)}, {vr(V_FR+8*s, 4)}, {vr(V_FR+8*s+4, 4)}, {cin}')
        stamp(a)
    a.barrier()

    a(f's_cmp_eq_u32 s{S_ROLE}, 0')
    a('s_cbranch_scc0 L_role1')
    b = a.fork()
    n0 = stamp_n[0]
    conv(a, 0, opt, stamp)
    finish(a, opt, stamp_n[0])
    stamp_n[0] = n0
    b.label('L_role1')
    conv(b, 1, opt, stamp)
    finish(b, opt, stamp_n[0])
    body = a.text() + b.text()
    return body, a, b


def finish(a, opt, nst):
    if opt.get('spin') or opt.get('amp'):
        lab = f'L_spin{id(a)}'
        a.wait(vm=0, lgkm=0)
        if opt.get('amp'):
            a.raw(f'    s_memrealtime s[92:93]')
            a.raw('    s_waitcnt lgkmcnt(0)')
            a.raw('    s_sub_u32 s96, s92, s90')
            a.raw(f'    s_mul_i32 s96, s96, {opt["amp"]}')
        else:
            a.raw(f'    s_mov_b32 s96, {opt["spin"]}')
        a.label(lab)
        a.raw(f'    s_memrealtime s[92:93]')
        a.raw('    s_waitcnt lgkmcnt(0)')
        a.raw('    s_sub_u32 s92, s92, s90')
        a.raw('    s_cmp_lt_u32 s92, s96')
        a.raw(f'    s_cbranch_scc1 {lab}')
    if opt.get('stamps'):
        a.wait(vm=0, lgkm=0)
        a.raw(f'    s_memtime {sr(S_STAMP + 2*nst, 2)}')
        a.raw(f'    s_memrealtime {sr(92, 2)}')
        a.raw('    s_waitcnt lgkmcnt(0)')
        a(f'v_mov_b32 v2, 0')
        for k in range(nst + 1):
            a(f's_sub_u32 s{S_T}, s{S_STAMP+2*k}, s{S_STAMP}')
            a(f'v_writelane_b32 v2, s{S_T}, {k}')
        a(f'v_writelane_b32 v2, s90, 14')
        a(f'v_writelane_b32 v2, s92, 15')
        a(f's_lshl_b32 s{S_T}, s2, 3')
        a(f's_add_u32 s{S_T}, s{S_T}, s{S_WAVE}')
        a(f's_lshl_b32 s{S_T}, s{S_T}, 8')
        a(f'v_lshl_add_u32 v3, v{V_LANE}, 2, s{S_T}')
        a(f'global_store_dword v3, v2, s[94:95]')
    a('s_endpgm')


def mf(a, acc, x, y, first=False):
    a(f'v_mfma_f32_16x16x32_bf16 {vr(acc, 4)}, {vr(x, 4)}, {vr(y, 4)}, {"0" if first else vr(acc, 4)}')


def conv(a, role, opt, stamp):
    tiles = [0, 1, 2, 3, 4] if role == 0 else [5, 6, 7]
    uoff = 1024 if role == 0 else 0
    acc = {it: V_ACC + 4 * k for k, it in enumerate(tiles)}
    started = set()

    def accum(it, x, y):
        mf(a, acc[it], x, y, it not in started)
        started.add(it)

    mt2 = sorted({it - d for it in tiles for d in (2, 3, 4) if it - d >= 0})
    mt3 = sorted({it - d for it in tiles for d in (4, 5, 6, 7) if it - d >= 0})
    mts = sorted(set(mt2) | set(mt3))
    d3 = sorted({it - mt for it in tiles for mt in mt3 if 4 <= it - mt <= 7})
    for mt in mts:
        a(f'ds_read_b128 {vr(V_G+4*mt, 4)}, v{V_UF} offset:{uoff + 512*mt}')
    D = V_D
    P0, P1, P2, P3 = V_TMP + 9, V_TMP + 11, V_TMP + 8, V_TMP + 10
    TA, TB, TC = V_TMP + 12, V_TMP + 13, V_TMP + 14
    a(f'''
    ds_write_addtid_b32 v{V_ZERO} offset:{T2}
    ds_write_addtid_b32 v{V_ZERO} offset:{T2+376}
    v_mov_b32 v{TA}, v{D+9}
    v_cvt_pk_bf16_f32 v{TB}, v{D+10}, v{D+11}
    v_add_f32 v{D}, v{D}, v{V_DSK}
    v_mov_b32_dpp v{TA}, v{D+8} wave_shl:1 row_mask:0xf bank_mask:0xf
    ds_write_b16 v{V_T3W}, v{TB}
    ds_write_b16_d16_hi v{V_T3W}, v{TB} offset:64
    v_cvt_pk_bf16_f32 v{TA}, v{D+9}, v{TA}
    v_cvt_pk_bf16_f32 v{TC}, -v{D+9}, v{V_ZERO}
    ds_write_addtid_b32 v{TA} offset:{T2+120}
    v_readlane_b32 s{S_KN}, v{TC}, 63
    ''')
    for k, dl in enumerate((2, 3, 4)):
        for q in range(4):
            a(f'ds_read_b64 {vr(V_K2F+8*k+2*q, 2)}, v{V_K2} offset:{128*k + 8*q}')
    for dl in d3:
        k = dl - 4
        a(f'ds_read2_b32 {vr(V_K3F+4*k, 2)}, v{V_K3} offset0:{16*k} offset1:{16*k+1}')
        a(f'ds_read2_b32 {vr(V_K3F+4*k+2, 2)}, v{V_K3} offset0:{16*k+2} offset1:{16*k+3}')
    KF = V_BAND + 24
    for q in range(4):
        a(f'v_mul_u32_u24 v{KF+q}, s{S_KN}, v{KF+q}')

    def t1_round(wa, wb, off):
        a(f'''
        ds_write_b64 v{wa}, {vr(P2, 2)} offset:{6*T1A + off}
        ds_write_b64 v{wb}, {vr(P3, 2)} offset:{off}
        ds_write_b32 v{wa}, v{P0} offset:{2*T1A + off}
        ds_write_b32 v{wb}, v{P2} offset:{2*T1A + 4 + off}
        ds_write_b32 v{wa}, v{P1} offset:{4*T1A + off}
        ds_write_b32 v{wb}, v{P3} offset:{4*T1A + 4 + off}
        ''')
    a(f'''
    v_cvt_pk_bf16_f32 v{TA}, v{D+12}, v{D+12}
    v_cvt_pk_bf16_f32 v{P2}, v{D+8}, v{D+12}
    v_cvt_pk_bf16_f32 v{P3}, v{D+8}, v{D+8}
    v_cvt_pk_bf16_f32 v{TB}, v{D}, v{V_ZERO}
    v_cndmask_b32 v{P0}, 0, v{TA}, {sr(S_L032, 2)}
    v_cndmask_b32 v{P2}, 0, v{P2}, {sr(S_L0, 2)}
    v_readlane_b32 s{S_T}, v{TB}, 0
    v_and_b32 v{TC}, s{S_HIMASK}, v{P0}
    v_cndmask_b32 v{P3}, 0, v{P3}, {sr(S_L0, 2)}
    v_cndmask_b32 v{P1}, v{TC}, v{P0}, {sr(S_L0, 2)}
    v_writelane_b32 v{P3}, s{S_T}, 1
    ''')
    t1_round(V_WA3, V_WB3, 0)
    a(f'''
    v_cvt_pk_bf16_f32 v{P0}, v{D+1}, v{D}
    v_cvt_pk_bf16_f32 v{P1}, v{D+2}, v{D+1}
    v_cvt_pk_bf16_f32 v{P2}, v{D+3}, v{D+2}
    v_cvt_pk_bf16_f32 v{P3}, v{D+7}, v{D+3}
    ''')
    t1_round(V_WA, V_WB, 0)
    a(f'''
    v_cvt_pk_bf16_f32 v{P0}, v{D+4}, v{D+4}
    v_cvt_pk_bf16_f32 v{P1}, v{D+5}, v{D+4}
    v_cvt_pk_bf16_f32 v{P2}, v{D+6}, v{D+5}
    v_cvt_pk_bf16_f32 v{P3}, v{D+6}, v{D+6}
    ''')
    t1_round(V_WA, V_WB, 256)
    stamp(a)

    wlo = max(8 * tiles[0] - 16, -8)
    whi = 8 * tiles[-1]
    order = []
    for w in range(wlo, whi + 1):
        for it in tiles:
            s = 8 * it - w
            if 0 <= s <= 16 and s not in order:
                order.append(s)
    kd_q = list(order)

    def kd_read(n=1):
        for _ in range(n):
            if kd_q:
                s = kd_q.pop(0)
                a(f'ds_read_b64 {vr(V_KD+4*s, 2)}, v{V_K1A} offset:{32*s}')
                a(f'ds_read_b64 {vr(V_KD+4*s+2, 2)}, v{V_K1B} offset:{32*s}')

    def box(mt):
        if mt in mt2:
            for sg in range(4):
                mf(a, V_RAW + 4 * sg, V_G + 4 * mt, V_BAND + 4 * sg, True)
                kd_read()
        if mt in mt3:
            for sg in range(2):
                mf(a, V_RAW + 16 + 4 * sg, V_G + 4 * mt, V_BAND + 16 + 4 * sg, True)
                kd_read()

    def cvts(mt):
        pk = V_PK + 12 * (mts.index(mt) % 2)
        out = []
        if mt in mt2:
            for fr in range(2):
                for jj in range(2):
                    j = 3 - 2 * fr - jj
                    out.append(f'v_cvt_pk_bf16_f32 v{pk+4*fr+2*jj}, v{V_RAW+j}, v{V_RAW+4+j}')
                    out.append(f'v_cvt_pk_bf16_f32 v{pk+4*fr+2*jj+1}, v{V_RAW+8+j}, v{V_RAW+12+j}')
        if mt in mt3:
            for jj in range(4):
                out.append(f'v_cvt_pk_bf16_f32 v{pk+8+jj}, v{V_RAW+16+3-jj}, v{V_RAW+20+3-jj}')
        return out

    def dil(mt):
        pk = V_PK + 12 * (mts.index(mt) % 2)
        out = []
        for it in tiles:
            dl = it - mt
            if mt in mt2 and 2 <= dl <= 4:
                out.append((it, pk, V_K2F + 8 * (dl - 2)))
                out.append((it, pk + 4, V_K2F + 8 * (dl - 2) + 4))
            if mt in mt3 and 4 <= dl <= 7:
                out.append((it, pk + 8, V_K3F + 4 * (dl - 4)))
            if dl == 4:
                out.append((it, KF, V_G + 4 * mt))
        return out

    prev = None
    for mt in mts + [None]:
        if mt is not None:
            box(mt)
        cq = cvts(mt) if mt is not None else []
        dq = dil(prev) if prev is not None else []
        for k, (it, x, y) in enumerate(dq):
            accum(it, x, y)
            kd_read()
            if k >= 2:
                for _ in range(2):
                    if cq:
                        a(cq.pop(0))
        for c in cq:
            a(c)
        prev = mt
    kd_read(17)
    stamp(a)

    NF = 6
    ring = [V_RAW + 4 * k for k in range(NF)]
    ws = list(range(wlo, whi + 1))

    def fread(w):
        a(f'ds_read_b128 {vr(ring[(w - wlo) % NF], 4)}, v{V_UF} offset:{uoff + 64*w + 16}')
    LOOK = 4
    for w in ws[:LOOK]:
        fread(w)
    pend = []
    OUTR = V_G

    def stage(it):
        slot = tiles.index(it)
        t = V_G + 8 + 2 * (slot % 2)
        a(f'v_cvt_pk_bf16_f32 v{t}, v{acc[it]}, v{acc[it]+1}')
        a(f'v_cvt_pk_bf16_f32 v{t+1}, v{acc[it]+2}, v{acc[it]+3}')
        a(f'ds_write_b64 v{V_SW}, {vr(t, 2)} offset:{576*slot}')

    def store(it):
        slot = tiles.index(it)
        lab = f'L_st{role}_{it}'
        a.barrier()
        a(f's_cmp_{"ge" if slot % 2 == 0 else "lt"}_u32 s{S_WAVE}, 4')
        a(f's_mov_b32 s{S_TILE}, {it*524288}')
        a(f's_cbranch_scc1 {lab}')
        o = OUTR + 4 * (slot % 2)
        a.raw(f'    ds_read_b64_tr_b16 {vr(o, 2)}, v{V_SR} offset:{576*slot}')
        a.raw(f'    ds_read_b64_tr_b16 {vr(o+2, 2)}, v{V_SR} offset:{576*slot + 4*RS}')
        a.raw(f'    s_waitcnt lgkmcnt(0)')
        a.raw(f'    buffer_store_dwordx4 {vr(o, 4)}, v{V_OUT}, {sr(S_OUT, 4)}, s{S_TILE} offen')
        a.label(lab)

    for w in ws:
        if w + LOOK <= whi:
            fread(w + LOOK)
        for it in tiles:
            s = 8 * it - w
            if 0 <= s <= 16:
                accum(it, V_KD + 4 * s, ring[(w - wlo) % NF])
                pend = [(c - 1, f) for c, f in pend]
                while pend and pend[0][0] <= 0:
                    pend.pop(0)[1]()
                if s == 0:
                    pend.append((4, lambda it=it: stage(it)))
                    pend.append((7, lambda it=it: store(it)))
    for c, f in pend:
        f()


HEADER = open('standalone__ssm_conv_s4__prompt.s.ref').read().split('; Override launch')[0]


def build(opt):
    body, a, b = gen(opt)
    s = HEADER
    s += f'; @launch grid=(256,1,1) block=(512,1,1) lds={LDS_BYTES}\n'
    s += '.amdgcn_target "amdgcn-amd-amdhsa--gfx950"\n.text\n'
    s += f'.globl {KNAME}\n.p2align 8\n.type {KNAME},@function\n{KNAME}:\n'
    s += body
    s += 'L_end:\n    s_endpgm\n'
    s += f'.set CODE_LAST, L_end - {KNAME} - 64\n'
    s += f'''.section .rodata,"a"
.p2align 6
.amdhsa_kernel {KNAME}
  .amdhsa_next_free_vgpr 256
  .amdhsa_next_free_sgpr 102
  .amdhsa_accum_offset 256
  .amdhsa_group_segment_fixed_size 0
  .amdhsa_kernarg_size 96
  .amdhsa_user_sgpr_count 2
  .amdhsa_user_sgpr_kernarg_segment_ptr 1
  .amdhsa_system_sgpr_workgroup_id_x 1
.end_amdhsa_kernel
'''
    return s, a, b


if __name__ == '__main__':
    out = sys.argv[1]
    opt = {}
    for kv in sys.argv[2:]:
        k, v = kv.split('=')
        opt[k] = int(v)
    s, a, b = build(opt)
    open(out, 'w').write(s)
    print('role0+common', a.stats, 'nops', a.nops, '| role1', b.stats, 'nops', b.nops)
```

```python
import sys
from asmlib import Asm, vr, sr

KNAME = 'standalone__ssm_conv_s4__prompt_kernel'

RS = 15040
ROW = 272
UT = 8 * RS
US = 4144
BAND = UT + 8 * US
LDS_BYTES = BAND + 8 * 1024
T1A = 608
T2 = 8 * T1A
T3 = T2 + 504
STG = 5696
assert T3 + 320 <= STG and STG + 5 * 576 <= RS and LDS_BYTES <= 163840

XROW = {0: 0, 1: 1, 2: 2, 3: 3, 4: 4, 5: 5, 6: 6, 7: 7, 256: 8, 258: 9, 260: 10, 1800: 11, 512: 12, 262: 13, 264: 14, 8: 15,
        516: 16, 520: 17, 1032: 18, 1288: 19, 772: 20, 776: 21, 1544: 22}

S_U, S_OUT = 24, 28
S_WAVE, S_ROLE, S_CG, S_BASE, S_PB = 32, 33, 34, 35, 36
S_T = 38
S_SELLO, S_SELHI, S_4096, S_HIMASK = 48, 49, 50, 51
S_L0, S_L032 = 52, 54
S_TILE = 56
S_KN = 57
S_STAMP = 60

(V_LANE, V_YR, V_XR, V_UF, V_UW, V_K1A, V_K1B, V_K2, V_K3, V_WA, V_WB, V_WA3, V_WB3, V_T3W, V_SW, V_SR, V_OUT,
 V_UL0, V_UL1, V_USW, V_DSK, V_ZERO) = range(1, 23)
V_US = 24
V_BAND = 28
V_ACC = 56
V_KD = 76
V_K2F = 144
V_K3F = 168
V_G = 184
V_RAW = 208
V_PK = 232
V_URAW = 56
V_PAR = 72
V_CC = 80
V_W = 86
V_FR = 144
V_D = 208
V_TMP = 224


def gen(opt):
    a = Asm()
    stamp_n = [0]

    def stamp(a):
        if opt.get('stamps'):
            a.raw(f'    s_memtime {sr(S_STAMP + 2*stamp_n[0], 2)}')
            a.smem.append('?')
            stamp_n[0] += 1

    if opt.get('stamps') or opt.get('spin') or opt.get('amp'):
        a.raw(f'    s_memrealtime {sr(90, 2)}')
    stamp(a)
    a(f's_load_dwordx16 s[4:19], s[0:1], 0')
    a(f's_load_dwordx4 s[20:23], s[0:1], 64')
    if opt.get('stamps'):
        a(f's_load_dwordx2 s[94:95], s[0:1], 88')
    a('s_cmp_ge_u32 s2, 256')
    a('s_cbranch_scc1 L_end')
    if opt.get('prefetch', 1):
        a(f's_getpc_b64 {sr(S_T, 2)}')
        a(f'v_lshlrev_b32 v{V_TMP}, 7, v0')
        a(f'v_min_u32 v{V_TMP}, CODE_LAST, v{V_TMP}')
        a(f'v_readfirstlane_b32 s{S_WAVE}, v0')
        a(f's_cmp_ge_u32 s{S_WAVE}, 128')
        a('s_cbranch_scc1 L_nopf')
        a.raw(f'    global_load_dword v{V_TMP+1}, v{V_TMP}, {sr(S_T, 2)}')
        a.label('L_nopf')
        a.vm.append([f'v{V_TMP+1}'])
    else:
        a(f'v_readfirstlane_b32 s{S_WAVE}, v0')
    a(f'''
    v_and_b32 v{V_LANE}, 63, v0
    s_lshr_b32 s{S_WAVE}, s{S_WAVE}, 6
    s_and_b32 s{S_T+2}, s2, 7
    s_lshr_b32 s{S_T+3}, s2, 3
    s_lshr_b32 s{S_ROLE}, s{S_T+3}, 4
    s_and_b32 s{S_T+4}, s{S_T+3}, 15
    s_lshl_b32 s{S_T+2}, s{S_T+2}, 4
    s_add_u32 s{S_T+2}, s{S_T+2}, s{S_T+4}
    s_lshl_b32 s{S_CG}, s{S_T+2}, 4
    s_lshl_b32 s{S_T+2}, s{S_T+2}, 3
    s_add_u32 s{S_T+2}, s{S_T+2}, s{S_WAVE}
    s_lshl_b32 s{S_T+4}, s{S_T+2}, 8
    s_lshl_b32 s{S_T+2}, s{S_T+2}, 1
    v_lshl_add_u32 v{V_TMP+2}, v{V_LANE}, 2, s{S_T+4}
    v_mov_b32 v{V_TMP+3}, s{S_T+2}
    s_add_u32 s{S_PB}, s{S_WAVE}, s{S_T+3}
    s_and_b32 s{S_PB}, s{S_PB}, 7
    s_mov_b32 s{S_U+3}, 0x00020000
    s_mov_b32 s{S_OUT+3}, 0x00020000
    s_mov_b32 s{S_OUT+2}, 4194304
    s_cmp_eq_u32 s{S_ROLE}, 0
    s_cselect_b32 s{S_U+2}, {1280*2048}, s{S_OUT+2}
    s_cselect_b32 s{S_T+5}, 512, 0
    s_lshl_b32 s{S_T+6}, s{S_PB}, 8
    s_sub_u32 s{S_T+6}, s{S_T+6}, s{S_T+5}
    s_lshl_b32 s{S_T+6}, s{S_T+6}, 11
    s_add_u32 s{S_T+6}, s{S_T+6}, s{S_CG}
    v_lshl_add_u32 v{V_UL1}, v{V_LANE}, 13, s{S_T+6}
    v_add_u32 v{V_UL0}, 0xfffff800, v{V_UL1}
    s_movk_i32 s{S_4096}, 4096
    ''')
    a(f'global_load_ushort v{V_PAR+6}, v{V_TMP+3}, s[18:19]')
    for k in range(6):
        a(f'global_load_dword v{V_PAR+k}, v{V_TMP+2}, s[{6+2*k}:{7+2*k}]')
    a(f'global_load_ushort v{V_PAR+7}, v{V_TMP+3}, s[20:21]')
    a(f'''
    s_mov_b32 s{S_U}, s4
    s_mov_b32 s{S_U+1}, s5
    s_mov_b32 s{S_OUT}, s22
    s_mov_b32 s{S_OUT+1}, s23
    ''')

    def uload(k):
        if k == 0:
            a(f'buffer_load_dwordx4 {vr(V_URAW, 4)}, v{V_UL0}, {sr(S_U, 4)}, 0 offen')
        elif k == 1:
            a(f'buffer_load_dwordx4 {vr(V_URAW+4, 4)}, v{V_UL1}, {sr(S_U, 4)}, 0 offen')
        elif k == 2:
            a(f'buffer_load_dwordx4 {vr(V_URAW+8, 4)}, v{V_UL1}, {sr(S_U, 4)}, 0 offen offset:2048')
        else:
            a(f'buffer_load_dwordx4 {vr(V_URAW+12, 4)}, v{V_UL1}, {sr(S_U, 4)}, s{S_4096} offen')
    uload(0)
    uload(1)
    stamp(a)

    C, H, F, G, T0, T1_, T2_, T3_ = range(V_TMP + 4, V_TMP + 12)
    a(f'''
    s_mul_i32 s{S_BASE}, s{S_WAVE}, {RS}
    s_mov_b32 m0, s{S_BASE}
    v_and_b32 v{C}, 31, v{V_LANE}
    v_lshrrev_b32 v{H}, 5, v{V_LANE}
    v_and_b32 v{F}, 15, v{V_LANE}
    v_lshrrev_b32 v{G}, 4, v{V_LANE}
    v_mov_b32 v{V_ZERO}, 0
    s_mov_b32 s{S_SELLO}, 0x05040100
    s_mov_b32 s{S_SELHI}, 0x07060302
    s_mov_b32 s{S_HIMASK}, 0xffff0000
    s_mov_b64 {sr(S_L0, 2)}, 1
    s_mov_b32 s{S_L032}, 1
    s_mov_b32 s{S_L032+1}, 1
    ''')
    lo = [6, 11, 14, 19, 5, 12, 5, 5]
    hi = [11, 14, 19, 22, 12, 21, 6, 6]
    pk_lo = sum(v << (8 * k) for k, v in enumerate(lo))
    pk_hi = sum(v << (8 * k) for k, v in enumerate(hi))
    B0 = V_TMP + 12
    a(f'''
    s_lshl_b32 s{S_T+2}, s{S_WAVE}, 3
    s_mov_b32 s{S_T+4}, {pk_lo & 0xffffffff}
    s_mov_b32 s{S_T+5}, {pk_lo >> 32}
    s_mov_b32 s{S_T+6}, {pk_hi & 0xffffffff}
    s_mov_b32 s{S_T+7}, {pk_hi >> 32}
    s_lshr_b64 {sr(S_T+4, 2)}, {sr(S_T+4, 2)}, s{S_T+2}
    s_lshr_b64 {sr(S_T+6, 2)}, {sr(S_T+6, 2)}, s{S_T+2}
    s_and_b32 s{S_T+4}, s{S_T+4}, 255
    s_and_b32 s{S_T+6}, s{S_T+6}, 255
    s_mov_b32 s{S_T+8}, 0x7f7f7f7f
    s_cmp_ge_u32 s{S_WAVE}, 6
    s_cselect_b32 s{S_T+8}, 0x01010101, s{S_T+8}
    s_cselect_b32 s{S_T+3}, 8, 1
    s_mov_b32 s{S_T+9}, s{S_T+8}
    v_lshlrev_b32 v{T0}, 3, v{G}
    v_sub_u32 v{T0}, v{T0}, v{F}
    v_add_u32 v{T0}, -14, v{T0}
    v_add_lshl_u32 v{T1_}, v{T0}, s{S_T+4}, 3
    v_add_lshl_u32 v{T2_}, v{T0}, s{S_T+6}, 3
    v_med3_i32 v{T1_}, v{T1_}, 0, 63
    v_med3_i32 v{T2_}, v{T2_}, 0, 63
    v_lshrrev_b64 {vr(B0, 2)}, v{T1_}, {sr(S_T+8, 2)}
    v_lshrrev_b64 {vr(B0+2, 2)}, v{T2_}, {sr(S_T+8, 2)}
    s_mov_b32 s{S_T+4}, 0x010c000c
    s_mov_b32 s{S_T+5}, 0x030c020c
    v_xor_b32 v{B0}, v{B0}, v{B0+2}
    v_xor_b32 v{B0+1}, v{B0+1}, v{B0+3}
    v_perm_b32 v{B0+4}, v{B0}, v{B0}, s{S_T+4}
    v_perm_b32 v{B0+5}, v{B0}, v{B0}, s{S_T+5}
    v_perm_b32 v{B0+6}, v{B0+1}, v{B0+1}, s{S_T+4}
    v_perm_b32 v{B0+7}, v{B0+1}, v{B0+1}, s{S_T+5}
    v_lshrrev_b32 v{B0+4}, s{S_T+3}, v{B0+4}
    v_lshrrev_b32 v{B0+5}, s{S_T+3}, v{B0+5}
    v_lshrrev_b32 v{B0+6}, s{S_T+3}, v{B0+6}
    v_lshrrev_b32 v{B0+7}, s{S_T+3}, v{B0+7}
    v_lshlrev_b32 v{T3_}, 4, v0
    v_add_u32 v{T3_}, {BAND}, v{T3_}
    ds_write_b128 v{T3_}, {vr(B0+4, 4)}
    v_mov_b32 v{T1_}, 0x3f80
    ds_write_addtid_b32 v{T1_} offset:0
    ''')
    a(f'''
    s_movk_i32 s{S_T+2}, {ROW}
    v_lshl_add_u32 v{T0}, v{H}, 4, s{S_BASE}
    v_mad_u32_u24 v{V_YR}, v{C}, s{S_T+2}, v{T0}
    v_add_u32 v{T1_}, -12, v{C}
    v_cmp_gt_u32 vcc, 24, v{C}
    v_add_u32 v{T0}, {32*ROW}, v{T0}
    v_cndmask_b32 v{T1_}, v{T1_}, v{C}, vcc
    v_writelane_b32 v{T1_}, 4, 11
    v_writelane_b32 v{T1_}, 4, 43
    v_writelane_b32 v{T1_}, 10, 12
    v_writelane_b32 v{T1_}, 10, 44
    v_writelane_b32 v{T1_}, 11, 23
    v_writelane_b32 v{T1_}, 11, 55
    v_mad_u32_u24 v{V_XR}, v{T1_}, s{S_T+2}, v{T0}
    ''')
    a(f'''
    s_mul_i32 s{S_T+2}, s{S_WAVE}, {US}
    s_add_u32 s{S_T+2}, s{S_T+2}, {UT}
    v_lshl_add_u32 v{T0}, v{F}, 5, s{S_T+2}
    v_lshl_add_u32 v{V_UF}, v{G}, 4, v{T0}
    s_lshl_b32 s{S_T+3}, s{S_PB}, 9
    s_add_u32 s{S_T+3}, s{S_T+3}, {UT+40}
    v_lshl_add_u32 v{V_UW}, v{V_LANE}, 3, s{S_T+3}
    v_cmp_gt_u32 vcc, 5, v{V_LANE}
    v_mov_b32 v{T0}, {4136//8}
    s_lshl_b32 s{S_T+3}, s{S_WAVE}, 1
    s_add_u32 s{S_T+3}, s{S_T+3}, s{S_CG}
    s_add_u32 s{S_T+3}, s{S_T+3}, {2047*2048}
    v_cndmask_b32 v{T0}, v{T0}, v{V_LANE}, vcc
    v_lshl_add_u32 v{V_USW}, v{T0}, 3, s{S_T+2}
    v_mov_b32 v{T0}, s{S_T+3}
    v_cndmask_b32 v{T0}, v{T0}, -1, vcc
    buffer_load_ushort v{V_US}, v{T0}, {sr(S_U, 4)}, 0 offen
    v_mov_b32 v{V_US+1}, 0
    ''')

    def pos(dst, n6, extra):
        a(f'''
        v_and_b32 v{T3_}, 1, v{n6}
        v_mad_u32_u24 v{T3_}, v{T3_}, s{S_T+4}, {extra}
        v_lshrrev_b32 v{dst}, 1, v{n6}
        v_lshl_add_u32 v{dst}, v{dst}, 3, v{T3_}
        ''')
    a(f'''
    s_movk_i32 s{S_T+4}, {T1A}
    s_movk_i32 s{S_T+5}, {2*T1A}
    v_mov_b32 v{B0}, s{S_BASE}
    v_add_u32 v{T0}, 13, v{F}
    v_and_b32 v{T1_}, 3, v{T0}
    v_mad_u32_u24 v{T1_}, v{T1_}, s{S_T+5}, v{B0}
    v_lshrrev_b32 v{T0}, 2, v{T0}
    v_lshlrev_b32 v{T2_}, 1, v{G}
    v_sub_u32 v{T0}, v{T0}, v{T2_}
    v_add_u32 v{T2_}, 6, v{T0}
    ''')
    pos(V_K1A, T2_, f'v{T1_}')
    a(f'v_add_u32 v{T2_}, 5, v{T0}')
    pos(V_K1B, T2_, f'v{T1_}')
    a(f'''
    v_lshlrev_b32 v{T0}, 2, v{G}
    v_sub_u32 v{T0}, v{F}, v{T0}
    s_add_u32 s{S_T+2}, s{S_BASE}, {T2 + 96}
    s_add_u32 s{S_T+3}, s{S_BASE}, {T3 + 48}
    v_lshl_add_u32 v{V_K2}, v{T0}, 3, s{S_T+2}
    v_lshl_add_u32 v{V_K3}, v{T0}, 2, s{S_T+3}
    v_lshl_add_u32 v{T0}, v{C}, 1, v{H}
    v_add_u32 v{T2_}, 6, v{T0}
    ''')
    pos(V_WA, T2_, f'v{B0}')
    a(f'v_add_u32 v{T2_}, 7, v{T0}')
    pos(V_WB, T2_, f'v{B0}')
    a(f'''
    v_min_u32 v{T0}, 5, v{C}
    v_sub_u32 v{T0}, 6, v{T0}
    v_min_u32 v{T1_}, 6, v{C}
    v_add_u32 v{T1_}, {129+6}, v{T1_}
    v_cmp_gt_u32 vcc, 32, v{V_LANE}
    s_movk_i32 s{S_T+2}, {128+6}
    v_cndmask_b32 v{T2_}, v{T1_}, v{T0}, vcc
    v_writelane_b32 v{T2_}, s{S_T+2}, 0
    ''')
    pos(V_WA3, T2_, f'v{B0}')
    a(f'v_add_u32 v{T2_}, 1, v{T2_}')
    pos(V_WB3, T2_, f'v{B0}')
    a(f'''
    s_add_u32 s{S_T+2}, s{S_BASE}, {T3 + 60}
    v_lshl_add_u32 v{T0}, v{H}, 7, s{S_T+2}
    v_lshl_add_u32 v{V_T3W}, v{C}, 1, v{T0}
    s_add_u32 s{S_T+2}, s{S_BASE}, {STG}
    s_movk_i32 s{S_T+3}, 144
    v_lshl_add_u32 v{T0}, v{F}, 3, s{S_T+2}
    v_mad_u32_u24 v{V_SW}, v{G}, s{S_T+3}, v{T0}
    s_and_b32 s{S_T+5}, s{S_WAVE}, 3
    s_lshl_b32 s{S_T+6}, s{S_T+5}, 5
    s_add_u32 s{S_T+6}, s{S_T+6}, {STG}
    v_lshl_add_u32 v{T0}, v{G}, 3, s{S_T+6}
    v_and_b32 v{T1_}, 3, v{F}
    v_mad_u32_u24 v{T0}, v{T1_}, s{S_T+3}, v{T0}
    v_lshrrev_b32 v{T1_}, 2, v{F}
    s_movk_i32 s{S_T+3}, {RS}
    v_mad_u32_u24 v{V_SR}, v{T1_}, s{S_T+3}, v{T0}
    s_lshl_b32 s{S_T+5}, s{S_T+5}, 17
    s_add_u32 s{S_T+5}, s{S_T+5}, s{S_CG}
    v_lshl_add_u32 v{V_OUT}, v{V_LANE}, 11, s{S_T+5}
    v_lshlrev_b32 v{T0}, 4, v{V_LANE}
    v_add_u32 v{T0}, {BAND}, v{T0}
    ''')
    a.barrier()
    for k in range(7):
        a(f'ds_read_b128 {vr(V_BAND+4*k, 4)}, v{T0} offset:{1024*k}')
    stamp(a)

    DT = V_CC + 4
    a(f'''
    v_lshlrev_b32 v{DT}, 16, v{V_PAR+6}
    v_mul_f32 v{DT}, 0x3fb8aa3b, v{DT}
    v_exp_f32 v{DT}, v{DT}
    v_cvt_pk_bf16_f32 v{DT}, v{DT}, v{DT}
    v_lshlrev_b32 v{DT}, 16, v{DT}
    v_mul_f32 v{V_CC}, 0x3fb8aa3b, v{DT}
    v_mul_f32 v{V_CC+1}, 0.15915494, v{DT}
    v_mul_f32 v{V_CC+2}, 0x43800000, v{V_CC}
    v_mul_f32 v{V_CC+3}, 0x43800000, v{V_CC+1}
    ''')
    stamp(a)

    names = ['z', 'z2', 'B', 'C', 'E1', 'E2', 'E4', 'E8', 'EH', 'P0', 'P1', 'P2', 'P3', 'P4', 'P5', 'P6', 'P7', 'P8',
             'Q0', 'Q1', 'Q2', 'Q3', 'M', 't0', 't1', 't2', 't3', 't4']
    R = {n: V_W + 2 * k for k, n in enumerate(names)}
    assert V_W + 2 * len(names) <= V_FR
    cv = [V_TMP + k for k in range(8)]
    cvi = [0]

    def p(n):
        return vr(R[n], 2)

    def cmuls(lst):
        for k, (d, x, y) in enumerate(lst):
            a(f'v_pk_mul_f32 {p("t%d" % k)}, {p(x)}, {p(y)} op_sel_hi:[1,0]')
        for k, (d, x, y) in enumerate(lst):
            a(f'v_pk_fma_f32 {p(d)}, {p(x)}, {p(y)}, {p("t%d" % k)} op_sel:[1,1,0] op_sel_hi:[0,1,1] neg_lo:[1,0,0]')

    def put(n, row, neg):
        c = cv[cvi[0] % len(cv)]
        cvi[0] += 1
        a(f'v_cvt_pk_bf16_f32 v{c}, v{R[n]}, {"-" if neg else ""}v{R[n]+1}')
        a(f'ds_write_addtid_b32 v{c} offset:{row*ROW}')

    def putx(n, x):
        put(n, 32 + XROW[x], True)

    def puty(n, y):
        put(n, y // 8, False)

    def transpose_u():
        for q in range(4):
            for hi_ in range(2):
                sel = S_SELHI if hi_ else S_SELLO
                t = V_TMP + 8 + 2 * ((2 * q + hi_) % 4)
                a(f'v_perm_b32 v{t}, v{V_URAW+4+q}, v{V_URAW+q}, s{sel}')
                a(f'v_perm_b32 v{t+1}, v{V_URAW+12+q}, v{V_URAW+8+q}, s{sel}')
                a(f'ds_write_b64 v{V_UW}, {vr(t, 2)} offset:{(2*q+hi_)*US}')
        a(f'ds_write_b64 v{V_USW}, {vr(V_US, 2)}')

    for ps in range(2):
        a.comment(f'---- K-gen pass {ps} ----')
        for k, (n, o) in enumerate([('z', 0), ('z', 1), ('B', 0), ('B', 1), ('C', 0), ('C', 1)]):
            if ps == 0:
                a(f'v_lshlrev_b32 v{R[n]+o}, 16, v{V_PAR+k}')
            else:
                a(f'v_and_b32 v{R[n]+o}, s{S_HIMASK}, v{V_PAR+k}')
        if ps == 0:
            a(f'v_lshlrev_b32 v{V_DSK}, 16, v{V_PAR+7}')
            a(f'v_cndmask_b32 v{V_DSK}, 0, v{V_DSK}, {sr(S_L0, 2)}')
            uload(2)
        a(f'''
        v_pk_mul_f32 {p('z2')}, {p('z')}, {vr(V_CC+2, 2)}
        v_pk_mul_f32 {p('z')}, {p('z')}, {vr(V_CC, 2)}
        v_pk_mul_f32 {p('B')}, {p('B')}, {vr(DT, 2)} op_sel_hi:[1,0]
        v_fract_f32 v{R['z']+1}, v{R['z']+1}
        v_fract_f32 v{R['z2']+1}, v{R['z2']+1}
        v_exp_f32 v{R['z']}, v{R['z']}
        v_cos_f32 v{R['E1']}, v{R['z']+1}
        v_sin_f32 v{R['E1']+1}, v{R['z']+1}
        v_exp_f32 v{R['z2']}, v{R['z2']}
        v_cos_f32 v{R['EH']}, v{R['z2']+1}
        v_sin_f32 v{R['EH']+1}, v{R['z2']+1}
        v_pk_mul_f32 {p('E1')}, {p('E1')}, {p('z')} op_sel_hi:[1,0]
        v_pk_mul_f32 {p('EH')}, {p('EH')}, {p('z2')} op_sel_hi:[1,0]
        ''')
        cmuls([('P0', 'C', 'B'), ('E2', 'E1', 'E1')])
        putx('P0', 0)
        cmuls([('E4', 'E2', 'E2'), ('P1', 'P0', 'E1'), ('P2', 'P0', 'E2')])
        putx('P1', 1); putx('P2', 2)
        cmuls([('Q0', 'E4', 'E4'), ('P3', 'P1', 'E2'), ('P4', 'P0', 'E4'), ('P5', 'P1', 'E4'), ('P6', 'P2', 'E4')])
        puty('Q0', 8); putx('P3', 3); putx('P4', 4); putx('P5', 5); putx('P6', 6)
        cmuls([('Q1', 'Q0', 'Q0'), ('P7', 'P3', 'E4'), ('P8', 'P0', 'Q0'), ('P0', 'P0', 'EH'), ('P2', 'P2', 'EH')])
        puty('Q1', 16); putx('P7', 7); putx('P8', 8); putx('P0', 256); putx('P2', 258)
        cmuls([('Q2', 'Q1', 'Q0'), ('M', 'Q1', 'Q1'), ('P4', 'P4', 'EH'), ('P6', 'P6', 'EH'), ('P8', 'P8', 'EH')])
        puty('Q2', 24); puty('M', 32); putx('P4', 260); putx('P6', 262); putx('P8', 264)
        xs = [[('P0', 512)], [('P4', 516)], [('P8', 520)], [('P4', 772)], [('P8', 776)], [('P8', 1032)], [('P8', 1288)]]
        for st in range(1, 8):
            lst = [('Q0', 'Q0', 'M'), ('Q1', 'Q1', 'M'), ('Q2', 'Q2', 'M')]
            if st < 7:
                lst.append(('Q3', 'M' if st == 1 else 'Q3', 'M'))
            lst += [(n, n, 'EH') for n, _ in xs[st - 1]]
            cmuls(lst)
            puty('Q0', 8 + 32 * st); puty('Q1', 16 + 32 * st); puty('Q2', 24 + 32 * st)
            if st < 7:
                puty('Q3', 32 + 32 * st)
            for n, x in xs[st - 1]:
                putx(n, x)
            if ps == 0 and st == 3:
                uload(3)
        cmuls([('P8', 'P8', 'EH')]); putx('P8', 1544)
        cmuls([('P8', 'P8', 'EH')]); putx('P8', 1800)
        for s in range(8):
            a(f'ds_read_b128 {vr(V_FR+8*s, 4)}, v{V_XR} offset:{32*s}')
            a(f'ds_read_b128 {vr(V_FR+8*s+4, 4)}, v{V_YR} offset:{32*s}')
        if ps == 1:
            transpose_u()
        for s in range(8):
            cin = '0' if (ps == 0 and s == 0) else vr(V_D, 16)
            a(f'v_mfma_f32_32x32x16_bf16 {vr(V_D, 16)}, {vr(V_FR+8*s, 4)}, {vr(V_FR+8*s+4, 4)}, {cin}')
        stamp(a)
    a.barrier()

    a(f's_cmp_eq_u32 s{S_ROLE}, 0')
    a('s_cbranch_scc0 L_role1')
    b = a.fork()
    n0 = stamp_n[0]
    conv(a, 0, opt, stamp)
    finish(a, opt, stamp_n[0])
    stamp_n[0] = n0
    b.label('L_role1')
    conv(b, 1, opt, stamp)
    finish(b, opt, stamp_n[0])
    body = a.text() + b.text()
    return body, a, b


def finish(a, opt, nst):
    if opt.get('spin') or opt.get('amp'):
        lab = f'L_spin{id(a)}'
        a.wait(vm=0, lgkm=0)
        if opt.get('amp'):
            a.raw(f'    s_memrealtime s[92:93]')
            a.raw('    s_waitcnt lgkmcnt(0)')
            a.raw('    s_sub_u32 s96, s92, s90')
            a.raw(f'    s_mul_i32 s96, s96, {opt["amp"]}')
        else:
            a.raw(f'    s_mov_b32 s96, {opt["spin"]}')
        def spin(lab):
            a.label(lab)
            a.raw(f'    s_memrealtime s[92:93]')
            a.raw('    s_waitcnt lgkmcnt(0)')
            a.raw('    s_sub_u32 s92, s92, s90')
            a.raw('    s_cmp_lt_u32 s92, s96')
            a.raw(f'    s_cbranch_scc1 {lab}')
        if opt.get('skew'):
            a.raw(f'    s_cmp_lg_u32 s{S_WAVE}, 0')
            a.raw('    s_cbranch_scc1 L_end')
            a.raw('    s_load_dwordx2 s[98:99], s[0:1], 80')
            a.raw('    s_waitcnt lgkmcnt(0)')
            a.raw('    s_not_b32 s97, s90')
            a.raw('    v_mov_b32 v2, s97')
            a.raw('    v_mov_b32 v3, 0')
            a.raw('    s_mov_b64 exec, 1')
            a.raw('    global_atomic_umax v3, v2, s[98:99] sc1')
            a.raw('    s_waitcnt vmcnt(0)')
        spin(lab)
        if opt.get('skew'):
            a.raw('    global_load_dword v4, v3, s[98:99] sc0 sc1')
            a.raw('    s_waitcnt vmcnt(0)')
            a.raw('    v_readfirstlane_b32 s92, v4')
            a.raw('    s_nop 3')
            a.raw('    s_sub_u32 s92, s92, s97')
            a.raw('    s_min_u32 s92, s92, 1000')
            a.raw(f'    s_mul_i32 s92, s92, {opt["skew"]}')
            a.raw('    s_add_u32 s96, s96, s92')
            spin(lab + 'b')
    if opt.get('stamps'):
        a.wait(vm=0, lgkm=0)
        a.raw(f'    s_memtime {sr(S_STAMP + 2*nst, 2)}')
        a.raw(f'    s_memrealtime {sr(92, 2)}')
        a.raw('    s_waitcnt lgkmcnt(0)')
        a(f'v_mov_b32 v2, 0')
        for k in range(nst + 1):
            a(f's_sub_u32 s{S_T}, s{S_STAMP+2*k}, s{S_STAMP}')
            a(f'v_writelane_b32 v2, s{S_T}, {k}')
        a(f'v_writelane_b32 v2, s90, 14')
        a(f'v_writelane_b32 v2, s92, 15')
        a(f's_lshl_b32 s{S_T}, s2, 3')
        a(f's_add_u32 s{S_T}, s{S_T}, s{S_WAVE}')
        a(f's_lshl_b32 s{S_T}, s{S_T}, 8')
        a(f'v_lshl_add_u32 v3, v{V_LANE}, 2, s{S_T}')
        a(f'global_store_dword v3, v2, s[94:95]')
    a('s_endpgm')


def mf(a, acc, x, y, first=False):
    a(f'v_mfma_f32_16x16x32_bf16 {vr(acc, 4)}, {vr(x, 4)}, {vr(y, 4)}, {"0" if first else vr(acc, 4)}')


def conv(a, role, opt, stamp):
    tiles = [0, 1, 2, 3, 4] if role == 0 else [5, 6, 7]
    uoff = 1024 if role == 0 else 0
    acc = {it: V_ACC + 4 * k for k, it in enumerate(tiles)}
    started = set()

    def accum(it, x, y):
        mf(a, acc[it], x, y, it not in started)
        started.add(it)

    mt2 = sorted({it - d for it in tiles for d in (2, 3, 4) if it - d >= 0})
    mt3 = sorted({it - d for it in tiles for d in (4, 5, 6, 7) if it - d >= 0})
    mts = sorted(set(mt2) | set(mt3))
    d3 = sorted({it - mt for it in tiles for mt in mt3 if 4 <= it - mt <= 7})
    for mt in mts:
        a(f'ds_read_b128 {vr(V_G+4*mt, 4)}, v{V_UF} offset:{uoff + 512*mt}')
    D = V_D
    P0, P1, P2, P3 = V_TMP + 9, V_TMP + 11, V_TMP + 8, V_TMP + 10
    TA, TB, TC = V_TMP + 12, V_TMP + 13, V_TMP + 14
    a(f'''
    ds_write_addtid_b32 v{V_ZERO} offset:{T2}
    ds_write_addtid_b32 v{V_ZERO} offset:{T2+376}
    v_mov_b32 v{TA}, v{D+9}
    v_cvt_pk_bf16_f32 v{TB}, v{D+10}, v{D+11}
    v_add_f32 v{D}, v{D}, v{V_DSK}
    v_mov_b32_dpp v{TA}, v{D+8} wave_shl:1 row_mask:0xf bank_mask:0xf
    ds_write_b16 v{V_T3W}, v{TB}
    ds_write_b16_d16_hi v{V_T3W}, v{TB} offset:64
    v_cvt_pk_bf16_f32 v{TA}, v{D+9}, v{TA}
    v_cvt_pk_bf16_f32 v{TC}, -v{D+9}, v{V_ZERO}
    ds_write_addtid_b32 v{TA} offset:{T2+120}
    v_readlane_b32 s{S_KN}, v{TC}, 63
    ''')
    for k, dl in enumerate((2, 3, 4)):
        for q in range(4):
            a(f'ds_read_b64 {vr(V_K2F+8*k+2*q, 2)}, v{V_K2} offset:{128*k + 8*q}')
    for dl in d3:
        k = dl - 4
        a(f'ds_read2_b32 {vr(V_K3F+4*k, 2)}, v{V_K3} offset0:{16*k} offset1:{16*k+1}')
        a(f'ds_read2_b32 {vr(V_K3F+4*k+2, 2)}, v{V_K3} offset0:{16*k+2} offset1:{16*k+3}')
    KF = V_BAND + 24
    for q in range(4):
        a(f'v_mul_u32_u24 v{KF+q}, s{S_KN}, v{KF+q}')

    def t1_round(wa, wb, off):
        a(f'''
        ds_write_b64 v{wa}, {vr(P2, 2)} offset:{6*T1A + off}
        ds_write_b64 v{wb}, {vr(P3, 2)} offset:{off}
        ds_write_b32 v{wa}, v{P0} offset:{2*T1A + off}
        ds_write_b32 v{wb}, v{P2} offset:{2*T1A + 4 + off}
        ds_write_b32 v{wa}, v{P1} offset:{4*T1A + off}
        ds_write_b32 v{wb}, v{P3} offset:{4*T1A + 4 + off}
        ''')
    a(f'''
    v_cvt_pk_bf16_f32 v{TA}, v{D+12}, v{D+12}
    v_cvt_pk_bf16_f32 v{P2}, v{D+8}, v{D+12}
    v_cvt_pk_bf16_f32 v{P3}, v{D+8}, v{D+8}
    v_cvt_pk_bf16_f32 v{TB}, v{D}, v{V_ZERO}
    v_cndmask_b32 v{P0}, 0, v{TA}, {sr(S_L032, 2)}
    v_cndmask_b32 v{P2}, 0, v{P2}, {sr(S_L0, 2)}
    v_readlane_b32 s{S_T}, v{TB}, 0
    v_and_b32 v{TC}, s{S_HIMASK}, v{P0}
    v_cndmask_b32 v{P3}, 0, v{P3}, {sr(S_L0, 2)}
    v_cndmask_b32 v{P1}, v{TC}, v{P0}, {sr(S_L0, 2)}
    v_writelane_b32 v{P3}, s{S_T}, 1
    ''')
    t1_round(V_WA3, V_WB3, 0)
    a(f'''
    v_cvt_pk_bf16_f32 v{P0}, v{D+1}, v{D}
    v_cvt_pk_bf16_f32 v{P1}, v{D+2}, v{D+1}
    v_cvt_pk_bf16_f32 v{P2}, v{D+3}, v{D+2}
    v_cvt_pk_bf16_f32 v{P3}, v{D+7}, v{D+3}
    ''')
    t1_round(V_WA, V_WB, 0)
    a(f'''
    v_cvt_pk_bf16_f32 v{P0}, v{D+4}, v{D+4}
    v_cvt_pk_bf16_f32 v{P1}, v{D+5}, v{D+4}
    v_cvt_pk_bf16_f32 v{P2}, v{D+6}, v{D+5}
    v_cvt_pk_bf16_f32 v{P3}, v{D+6}, v{D+6}
    ''')
    t1_round(V_WA, V_WB, 256)
    stamp(a)

    wlo = max(8 * tiles[0] - 16, -8)
    whi = 8 * tiles[-1]
    order = []
    for w in range(wlo, whi + 1):
        for it in tiles:
            s = 8 * it - w
            if 0 <= s <= 16 and s not in order:
                order.append(s)
    kd_q = list(order)

    def kd_read(n=1):
        for _ in range(n):
            if kd_q:
                s = kd_q.pop(0)
                a(f'ds_read_b64 {vr(V_KD+4*s, 2)}, v{V_K1A} offset:{32*s}')
                a(f'ds_read_b64 {vr(V_KD+4*s+2, 2)}, v{V_K1B} offset:{32*s}')

    def box(mt):
        if mt in mt2:
            for sg in range(4):
                mf(a, V_RAW + 4 * sg, V_G + 4 * mt, V_BAND + 4 * sg, True)
                kd_read()
        if mt in mt3:
            for sg in range(2):
                mf(a, V_RAW + 16 + 4 * sg, V_G + 4 * mt, V_BAND + 16 + 4 * sg, True)
                kd_read()

    def cvts(mt):
        pk = V_PK + 12 * (mts.index(mt) % 2)
        out = []
        if mt in mt2:
            for fr in range(2):
                for jj in range(2):
                    j = 3 - 2 * fr - jj
                    out.append(f'v_cvt_pk_bf16_f32 v{pk+4*fr+2*jj}, v{V_RAW+j}, v{V_RAW+4+j}')
                    out.append(f'v_cvt_pk_bf16_f32 v{pk+4*fr+2*jj+1}, v{V_RAW+8+j}, v{V_RAW+12+j}')
        if mt in mt3:
            for jj in range(4):
                out.append(f'v_cvt_pk_bf16_f32 v{pk+8+jj}, v{V_RAW+16+3-jj}, v{V_RAW+20+3-jj}')
        return out

    def dil(mt):
        pk = V_PK + 12 * (mts.index(mt) % 2)
        out = []
        for it in tiles:
            dl = it - mt
            if mt in mt2 and 2 <= dl <= 4:
                out.append((it, pk, V_K2F + 8 * (dl - 2)))
                out.append((it, pk + 4, V_K2F + 8 * (dl - 2) + 4))
            if mt in mt3 and 4 <= dl <= 7:
                out.append((it, pk + 8, V_K3F + 4 * (dl - 4)))
            if dl == 4:
                out.append((it, KF, V_G + 4 * mt))
        return out

    prev = None
    for mt in mts + [None]:
        if mt is not None:
            box(mt)
        cq = cvts(mt) if mt is not None else []
        dq = dil(prev) if prev is not None else []
        for k, (it, x, y) in enumerate(dq):
            accum(it, x, y)
            kd_read()
            if k >= 2:
                for _ in range(2):
                    if cq:
                        a(cq.pop(0))
        for c in cq:
            a(c)
        prev = mt
    kd_read(17)
    stamp(a)

    NF = 6
    ring = [V_RAW + 4 * k for k in range(NF)]
    ws = list(range(wlo, whi + 1))

    def fread(w):
        a(f'ds_read_b128 {vr(ring[(w - wlo) % NF], 4)}, v{V_UF} offset:{uoff + 64*w + 16}')
    LOOK = 4
    for w in ws[:LOOK]:
        fread(w)
    pend = []
    OUTR = V_G

    def stage(it):
        slot = tiles.index(it)
        t = V_G + 8 + 2 * (slot % 2)
        a(f'v_cvt_pk_bf16_f32 v{t}, v{acc[it]}, v{acc[it]+1}')
        a(f'v_cvt_pk_bf16_f32 v{t+1}, v{acc[it]+2}, v{acc[it]+3}')
        a(f'ds_write_b64 v{V_SW}, {vr(t, 2)} offset:{576*slot}')

    def store(it):
        slot = tiles.index(it)
        lab = f'L_st{role}_{it}'
        a.barrier()
        a(f's_cmp_{"ge" if slot % 2 == 0 else "lt"}_u32 s{S_WAVE}, 4')
        a(f's_mov_b32 s{S_TILE}, {it*524288}')
        a(f's_cbranch_scc1 {lab}')
        o = OUTR + 4 * (slot % 2)
        a.raw(f'    ds_read_b64_tr_b16 {vr(o, 2)}, v{V_SR} offset:{576*slot}')
        a.raw(f'    ds_read_b64_tr_b16 {vr(o+2, 2)}, v{V_SR} offset:{576*slot + 4*RS}')
        a.raw(f'    s_waitcnt lgkmcnt(0)')
        a.raw(f'    buffer_store_dwordx4 {vr(o, 4)}, v{V_OUT}, {sr(S_OUT, 4)}, s{S_TILE} offen{["", " nt", " sc1", " sc0 sc1", " sc0 sc1 nt"][opt.get("stf", 0)]}')
        a.label(lab)

    for w in ws:
        if w + LOOK <= whi:
            fread(w + LOOK)
        for it in tiles:
            s = 8 * it - w
            if 0 <= s <= 16:
                accum(it, V_KD + 4 * s, ring[(w - wlo) % NF])
                pend = [(c - 1, f) for c, f in pend]
                while pend and pend[0][0] <= 0:
                    pend.pop(0)[1]()
                if s == 0:
                    pend.append((4, lambda it=it: stage(it)))
                    pend.append((7, lambda it=it: store(it)))
    for c, f in pend:
        f()


HEADER = open('standalone__ssm_conv_s4__prompt.s.ref').read().split('; Override launch')[0]


def build(opt):
    body, a, b = gen(opt)
    s = HEADER
    s += f'; @launch grid=(256,1,1) block=(512,1,1) lds={LDS_BYTES}\n'
    s += '.amdgcn_target "amdgcn-amd-amdhsa--gfx950"\n.text\n'
    s += f'.globl {KNAME}\n.p2align 8\n.type {KNAME},@function\n{KNAME}:\n'
    s += body
    s += 'L_end:\n    s_endpgm\n'
    s += f'.set CODE_LAST, L_end - {KNAME} - 64\n'
    s += f'''.section .rodata,"a"
.p2align 6
.amdhsa_kernel {KNAME}
  .amdhsa_next_free_vgpr 256
  .amdhsa_next_free_sgpr 102
  .amdhsa_accum_offset 256
  .amdhsa_group_segment_fixed_size 0
  .amdhsa_kernarg_size 96
  .amdhsa_user_sgpr_count 2
  .amdhsa_user_sgpr_kernarg_segment_ptr 1
  .amdhsa_system_sgpr_workgroup_id_x 1
.end_amdhsa_kernel
'''
    return s, a, b


if __name__ == '__main__':
    out = sys.argv[1]
    opt = {}
    for kv in sys.argv[2:]:
        k, v = kv.split('=')
        opt[k] = int(v)
    s, a, b = build(opt)
    open(out, 'w').write(s)
    print('role0+common', a.stats, 'nops', a.nops, '| role1', b.stats, 'nops', b.nops)
```

```python
import re, copy

TRANS = ('v_exp_f32', 'v_log_f32', 'v_rcp_f32', 'v_rsq_f32', 'v_sqrt_f32', 'v_sin_f32', 'v_cos_f32')


def regs_of(tok):
    tok = tok.strip()
    tok = tok.lstrip('-')
    m = re.fullmatch(r'abs\((.*)\)', tok) or re.fullmatch(r'\|(.*)\|', tok)
    if m:
        tok = m.group(1)
    m = re.fullmatch(r'([vsa])(\d+)', tok)
    if m:
        return [tok]
    m = re.fullmatch(r'([vsa])\[(\d+):(\d+)\]', tok)
    if m:
        return [f'{m.group(1)}{i}' for i in range(int(m.group(2)), int(m.group(3)) + 1)]
    if tok in ('vcc', 'exec', 'm0'):
        return [tok]
    if tok in ('vcc_lo', 'vcc_hi'):
        return ['vcc']
    if tok in ('exec_lo', 'exec_hi'):
        return ['exec']
    return []


class Ins:
    __slots__ = ('text', 'op', 'dst', 'src', 'kind', 'srcC', 'srcAB', 'passes', 'wide_store', 'dpp')


def parse(text):
    t = text.strip()
    parts = t.split(None, 1)
    op = parts[0]
    rest = parts[1] if len(parts) > 1 else ''
    ops, depth, cur = [], 0, ''
    for ch in rest:
        if ch == '[':
            depth += 1
        if ch == ']':
            depth -= 1
        if ch == ',' and depth == 0:
            ops.append(cur)
            cur = ''
        else:
            cur += ch
    if cur.strip():
        ops.append(cur)
    if ops:
        ops[-1] = ops[-1].strip().split(' ')[0]
    ops = [o.strip() for o in ops]
    i = Ins()
    i.text, i.op = t, op
    i.srcC, i.srcAB, i.passes, i.wide_store = [], [], 0, False
    i.dpp = '_dpp' in op or 'row_' in rest or 'wave_sh' in rest or 'quad_perm' in rest
    R = [regs_of(o) for o in ops]
    flat = lambda l: [r for x in l for r in x]
    if op.startswith('v_mfma'):
        i.kind = 'mfma'
        i.dst = R[0]
        i.srcAB = R[1] + R[2]
        i.srcC = R[3]
        i.src = i.srcAB + i.srcC
        i.passes = 8 if '32x32' in op else 4
    elif op.startswith('v_'):
        i.kind = 'trans' if any(op.startswith(x) for x in TRANS) else 'valu'
        i.dst = R[0]
        i.src = flat(R[1:])
        if op.startswith(('v_fmac', 'v_writelane', 'v_pk_fmac')) or i.dpp:
            i.src = i.src + R[0]
        if op.startswith('v_cndmask') and len(ops) == 3:
            i.src = i.src + ['vcc']
        if op.startswith(('v_add_co', 'v_addc_co', 'v_sub_co')):
            i.dst = R[0] + R[1]
            i.src = flat(R[2:])
    elif op.startswith('ds_read'):
        i.kind = 'lds'
        i.dst = R[0]
        i.src = flat(R[1:])
    elif op.startswith('ds_'):
        i.kind = 'lds'
        i.dst = []
        i.src = flat(R)
        if 'addtid' in op:
            i.src = i.src + ['m0']
    elif op.startswith(('buffer_load', 'global_load')):
        i.kind = 'vmem'
        if 'lds' in op or ' lds' in rest:
            i.dst = []
            i.src = flat(R) + ['m0']
        else:
            i.dst = R[0]
            i.src = flat(R[1:])
    elif op.startswith(('buffer_store', 'global_store')):
        i.kind = 'vmem'
        i.dst = []
        i.src = flat(R)
        i.wide_store = 'x4' in op or 'x3' in op
    elif op.startswith(('s_load', 's_memtime', 's_memrealtime', 's_buffer_load')):
        i.kind = 'smem'
        i.dst = R[0]
        i.src = flat(R[1:])
    elif op.startswith('s_'):
        i.kind = 'salu'
        if op.startswith(('s_cmp', 's_cbranch', 's_branch', 's_waitcnt', 's_nop', 's_barrier', 's_setprio', 's_endpgm', 's_sleep', 's_setpc')):
            i.dst = []
            i.src = flat(R)
        else:
            i.dst = R[0]
            i.src = flat(R[1:])
    else:
        raise ValueError(text)
    return i


class Asm:
    def __init__(self):
        self.lines = []
        self.hist = []
        self.lgkm = []
        self.smem = []
        self.vm = []
        self.nops = 0
        self.stats = {}
        self.now = None
        self.next_done = None
        self.ldone = {}

    def fork(self):
        o = Asm()
        o.hist = list(self.hist)
        o.lgkm = [list(x) for x in self.lgkm]
        o.smem = list(self.smem)
        o.vm = [list(x) for x in self.vm]
        return o

    def raw(self, s):
        self.lines.append(s)

    def label(self, s):
        self.lines.append(s + ':')

    def comment(self, s):
        self.lines.append('    ; ' + s)

    def _push(self, i, states=1):
        self.lines.append('    ' + i.text)
        self.hist.append((i, states))
        if len(self.hist) > 40:
            self.hist.pop(0)
        self.stats[i.kind] = self.stats.get(i.kind, 0) + 1

    def wait(self, vm=None, lgkm=None):
        parts = []
        if vm is not None:
            parts.append(f'vmcnt({vm})')
            self.vm = self.vm[len(self.vm) - vm:] if vm < len(self.vm) and vm > 0 else ([] if vm == 0 else self.vm)
        if lgkm is not None:
            parts.append(f'lgkmcnt({lgkm})')
            if lgkm == 0:
                self.lgkm, self.smem = [], []
            else:
                assert not self.smem, 'counted lgkmcnt with scalar loads outstanding'
                if lgkm < len(self.lgkm):
                    self.lgkm = self.lgkm[len(self.lgkm) - lgkm:]
        self._push(parse('s_waitcnt ' + ' '.join(parts)))

    def nop(self, n):
        while n > 0:
            k = min(n, 16)
            self._push(parse(f's_nop {k-1}'), k)
            self.nops += k
            n -= k

    def _need_states(self, i):
        need = 0
        dist = 0
        rs, ws = set(i.src), set(i.dst)
        for p, st in reversed(self.hist):
            req = 0
            pd = set(p.dst)
            pv = {r for r in pd if r[0] in 'va' and r != 'vcc'}
            ps = pd - pv
            if p.kind == 'mfma':
                big = 12 if p.passes == 8 else 8
                if i.kind == 'mfma':
                    if pd & set(i.srcAB):
                        req = max(req, big)
                    if pd & set(i.srcC):
                        if not (list(p.dst) == list(i.srcC) and p.passes == i.passes):
                            req = max(req, big - 2)
                    elif pd & ws:
                        req = max(req, big)
                elif i.kind in ('valu', 'trans', 'lds', 'vmem'):
                    if pd & (rs | ws):
                        req = max(req, big)
                    if i.kind in ('valu', 'trans') and set(p.srcC) & ws:
                        req = max(req, 7 if p.passes == 8 else 3)
            elif p.kind in ('valu', 'trans'):
                if i.kind == 'mfma' and pv & rs:
                    req = max(req, 2)
                if i.kind == 'mfma' and 'exec' in pd:
                    req = max(req, 4)
                if p.kind == 'trans' and i.kind == 'valu' and pv & rs:
                    req = max(req, 1)
                if p.kind == 'trans' and i.kind in ('lds', 'vmem') and pv & rs:
                    req = max(req, 1)
                if i.kind in ('valu', 'trans'):
                    if i.dpp and pv & rs:
                        req = max(req, 2)
                    if i.op.startswith(('v_readlane', 'v_readfirstlane')) and pv & rs:
                        req = max(req, 1)
                    if i.op.startswith('v_permlane') and pv & (rs | ws):
                        req = max(req, 2)
                    if ps & rs:
                        req = max(req, 4 if i.op.startswith(('v_readlane', 'v_writelane')) else 2)
                if i.kind == 'vmem' and ps & rs:
                    req = max(req, 5)
                if i.kind in ('salu', 'smem') and ps & rs:
                    req = max(req, 1)
            elif p.kind == 'salu':
                if 'm0' in pd and 'm0' in rs and i.kind in ('lds', 'vmem'):
                    req = max(req, 1)
            elif p.kind == 'vmem' and p.wide_store:
                if set(p.src) & ws and i.kind in ('valu', 'trans', 'mfma'):
                    req = max(req, 2)
                elif set(p.src) & ws:
                    req = max(req, 1)
            need = max(need, req - dist)
            dist += st
            if dist >= 20:
                break
        return need

    def __call__(self, text):
        for ln in text.strip().split('\n'):
            ln = ln.split(';')[0].strip()
            if ln:
                self.one(ln)

    def one(self, text):
        i = parse(text)
        touched = set(i.src) | set(i.dst)
        wv = wl = None
        for n, d in enumerate(self.vm):
            if touched & set(d):
                wv = len(self.vm) - 1 - n
        for n, d in enumerate(self.lgkm):
            if touched & set(d):
                wl = len(self.lgkm) - 1 - n
        if touched & set(self.smem):
            wl = 0
        if wl is not None and self.smem:
            wl = 0
        if wl is not None and wl > 0 and self.now is not None:
            n = len(self.lgkm)
            while wl > 0 and self.ldone.get(id(self.lgkm[n - wl]), 1 << 60) <= self.now:
                wl -= 1
        if wl is not None:
            wl = min(wl, 15)
        if wv is not None or wl is not None:
            self.wait(vm=wv, lgkm=wl)
        n = self._need_states(i)
        if n > 0:
            self.nop(n)
        self._push(i)
        if i.kind == 'lds':
            e = list(i.dst)
            self.lgkm.append(e)
            self.keep = getattr(self, 'keep', [])
            self.keep.append(e)
            if self.next_done is not None:
                self.ldone[id(e)] = self.next_done
        elif i.kind == 'vmem':
            self.vm.append(list(i.dst))
        elif i.kind == 'smem':
            self.smem += list(i.dst) or ['?']

    def barrier(self):
        if self.lgkm_has_write():
            self.wait(lgkm=self.lgkm_after_last_write())
        self.one('s_barrier')

    def lgkm_has_write(self):
        return any(len(d) == 0 for d in self.lgkm)

    def lgkm_after_last_write(self):
        last = max(n for n, d in enumerate(self.lgkm) if len(d) == 0)
        k = len(self.lgkm) - 1 - last
        return 0 if self.smem else min(k, 15)

    def text(self):
        return '\n'.join(self.lines) + '\n'


def vr(a, n=1):
    return f'v{a}' if n == 1 else f'v[{a}:{a+n-1}]'


def sr(a, n=1):
    return f's{a}' if n == 1 else f's[{a}:{a+n-1}]'


LDS_COST = {'ds_write_addtid_b32': 2, 'ds_write_b16': 4, 'ds_write_b16_d16_hi': 4, 'ds_write_b32': 4, 'ds_write_b64': 6,
            'ds_write2_b32': 6, 'ds_write_b128': 13, 'ds_read_b32': 2, 'ds_read_b64': 2, 'ds_read2_b32': 4,
            'ds_read_b128': 4, 'ds_read_b64_tr_b16': 2}


class Item:
    def __init__(self, text=None, mr=(), mw=(), fn=None, src=(), dst=(), cost=4, prio=None, delay=0, notbefore=0):
        self.text, self.mr, self.mw, self.fn, self.cost, self.prio = text, set(mr), set(mw), fn, cost, prio
        self.delay = delay
        self.notbefore = notbefore
        if text is not None:
            self.ins = parse(text)
            self.src, self.dst, self.kind = set(self.ins.src), set(self.ins.dst), self.ins.kind
        else:
            self.ins = None
            self.src, self.dst, self.kind = set(src), set(dst), 'block'


def hazard_states(p, i):
    if p.ins is None or i.ins is None:
        return 0
    if p.kind == 'mfma':
        big = 12 if p.ins.passes == 8 else 8
        if i.kind == 'mfma':
            if p.dst & set(i.ins.srcAB):
                return big
            if p.dst & set(i.ins.srcC):
                return 0 if list(p.ins.dst) == list(i.ins.srcC) else big - 2
            if p.dst & i.dst:
                return big
            return 0
        if p.dst & (i.src | i.dst):
            return big
        return 0
    if p.kind in ('valu', 'trans'):
        pv = {r for r in p.dst if r[0] == 'v' and r != 'vcc'}
        ps = p.dst - pv
        if i.kind == 'mfma' and pv & i.src:
            return 2
        if i.kind in ('valu', 'trans'):
            if ps & i.src:
                return 4 if i.ins.op.startswith(('v_readlane', 'v_writelane')) else 2
            if i.ins.dpp and pv & i.src:
                return 2
            if i.ins.op.startswith(('v_readlane', 'v_readfirstlane')) and pv & i.src:
                return 1
            if p.kind == 'trans' and i.kind == 'valu' and pv & i.src:
                return 1
    return 0


def schedule(a, items, share=2, nw=8, lds_lat=110, verbose=False, t_lds0=0, ladder=0, merge=40, ahead=16, inorder_mfma=False, group=4, drop=(), urgent_nops=4):
    n = len(items)
    preds = [dict() for _ in range(n)]
    lastw, readers = {}, {}
    mlastw, mreaders = {}, {}
    lastm = None
    for k, it in enumerate(items):
        for r in it.src:
            if r in lastw:
                preds[k][lastw[r]] = 'raw'
        for r in it.dst:
            if r in lastw:
                preds[k].setdefault(lastw[r], 'waw')
            for q in readers.get(r, ()):
                if q != k:
                    preds[k].setdefault(q, 'ord')
        for m in it.mr:
            for q in mlastw.get(m, ()):
                preds[k].setdefault(q, 'mem')
        for m in it.mw:
            for q in mreaders.get(m, ()):
                if q != k:
                    preds[k].setdefault(q, 'ord')
            for q in mlastw.get(m, ()):
                preds[k].setdefault(q, 'ord')
        if inorder_mfma and it.kind == 'mfma':
            if lastm is not None:
                preds[k].setdefault(lastm, 'ord')
            lastm = k
        for r in it.src:
            readers.setdefault(r, []).append(k)
        for r in it.dst:
            lastw[r] = k
            readers[r] = []
        for m in it.mr:
            mreaders.setdefault(m, []).append(k)
        for m in it.mw:
            mlastw.setdefault(m, []).append(k)
    done = [None] * n
    issued = [None] * n
    pos = [None] * n
    t = 0
    free = {'valu': 0, 'mfma': 0, 'lds': t_lds0}
    order = []
    times = []
    left = set(range(n))

    ingroup = [0]
    vec_ok = [0]

    def ready_time(k):
        it = items[k]
        rt = it.notbefore
        short = 0
        for p, kind in preds[k].items():
            if issued[p] is None:
                return None, 0
            pi = items[p]
            if kind in ('raw', 'waw'):
                if pi.kind == 'mfma' and it.kind == 'mfma' and it.ins.srcC == pi.ins.dst and not (set(it.ins.srcAB) & pi.dst):
                    rt = max(rt, issued[p])
                else:
                    rt = max(rt, done[p])
                short = max(short, hazard_states(pi, it) - (len(order) - pos[p] - 1))
            elif kind == 'mem' and it.kind == 'block':
                rt = max(rt, done[p] + it.delay)
            else:
                rt = max(rt, issued[p])
        if it.kind == 'mfma':
            rt = max(rt, free['mfma'] - 4)
        elif it.kind in ('valu', 'trans'):
            rt = max(rt, free['valu'] - 4)
        elif it.kind == 'lds' and not (0 < ingroup[0] < group):
            rt = max(rt, free['lds'] - ahead)
        return rt, short
    rank = {'mfma': 0, 'block': 1, 'lds': 2, 'vmem': 2, 'valu': 3, 'trans': 3, 'salu': 4, 'smem': 3}
    while left:
        cand = []
        for k in left:
            rt, short = ready_time(k)
            if rt is not None:
                if items[k].prio == 0 and short > 0 and short <= urgent_nops:
                    short = 0
                cand.append((rt, short, k))
        key = lambda k: (-1 if (items[k].kind == 'lds' and 0 < ingroup[0] < group) else rank[items[k].kind],
                         items[k].prio if items[k].prio is not None else k, k)
        now = [key(k) for rt, short, k in cand if rt <= t and short <= 0]
        if not now and ingroup[0]:
            ingroup[0] = 0
            continue
        if not now:
            clean = [rt for rt, short, k in cand if short <= 0]
            dirty = [(max(rt, t) + 4 * short, key(k)) for rt, short, k in cand if short > 0]
            if clean and (not dirty or min(clean) <= min(dirty)[0] + 24):
                t = min(clean)
                continue
            t, kk = min(dirty)
            now = [kk]
        k = min(now)[2]
        it = items[k]
        if it.kind == 'lds':
            ingroup[0] = ingroup[0] + 1 if ingroup[0] < group else 1
        else:
            ingroup[0] = 0
            if it.kind in ('mfma', 'valu', 'trans'):
                t = max(t, vec_ok[0])
        issued[k] = t
        pos[k] = len(order)
        times.append(t)
        if it.kind == 'mfma':
            c = 4 * it.ins.passes
            start = max(t, free['mfma'])
            free['mfma'] = start + c * share
            free['valu'] = max(free['valu'], t) + 8 * share
            done[k] = start + c + 24
            t += 8
        elif it.kind in ('valu', 'trans'):
            c = 8 if it.kind == 'trans' else 4
            free['valu'] = max(free['valu'], t) + c * share
            done[k] = t + c + 4
            t += c
        elif it.kind == 'lds':
            c = LDS_COST[it.ins.op]
            start = max(t, free['lds'])
            free['lds'] = start + c * nw
            done[k] = start + c * nw + lds_lat - 40
            nvec = max(1, len([r for r in it.ins.src if r[0] == 'v']))
            t += 4 * nvec
            vec_ok[0] = t + 8
        else:
            done[k] = t + it.cost
            t += it.cost
        order.append(k)
        left.remove(k)
    if verbose:
        bars = [(times[j], sum(items[q].kind == 'mfma' for q in order[:j])) for j, k in enumerate(order) if 'bar' in items[k].mw]
        print('  schedule: model time', t, 'mfma free', free['mfma'], 'lds free', free['lds'], 'barriers (t, mfma#)', bars)
    prio_at = {}
    if ladder:
        seg = []
        segs = []
        for j, k in enumerate(order):
            if items[k].kind == 'mfma':
                seg.append(j)
            if 'bar' in items[k].mw:
                segs.append(seg)
                seg = []
        for seg in segs:
            w = [items[order[j]].ins.passes for j in seg]
            tot, run, lvl = sum(w), 0, ladder
            for j, x in zip(seg, w):
                want = ladder - 1 - (run * ladder) // tot
                if want != lvl:
                    prio_at[j] = want
                    lvl = want
                run += x
    for j, k in enumerate(order):
        it = items[k]
        a.now = times[j] - merge
        if j in prio_at:
            a.one(f's_setprio {prio_at[j]}')
        if it.fn:
            a.next_done = None
            it.fn()
        elif it.kind in drop or (it.kind == 'lds' and (('ldsr' in drop and it.ins.dst) or ('ldsw' in drop and not it.ins.dst))):
            pass
        else:
            a.next_done = done[k]
            a.one(it.text)
    a.now = a.next_done = None
    return t
```

```python
import sys
from asmlib import Asm, vr, sr, Item, schedule

KNAME = 'standalone__ssm_conv_s4__prompt_kernel'

RS = 16320
ROW = 272
NROWS = 54
UT = 8 * RS
US = 4160
LDS_BYTES = UT + 8 * US
BAND = 4096
STG = 18 * ROW
T2 = NROWS * ROW
T2B = 376
T3 = T2 + 820
assert T3 + 316 <= RS and LDS_BYTES <= 163840 and T2 % 16 == 0

XROW = {0: 15, 1: 5, 2: 19, 3: 20, 4: 3, 5: 4, 6: 9, 7: 8, 8: 21, 256: 12, 258: 14, 260: 11, 262: 7, 264: 2, 516: 13, 520: 18,
        772: 10, 776: 6, 1032: 1, 1288: 17, 1544: 0, 1800: 16}
XV = [(v, 256 + [0, 0, 2, 4, 4, 4, 6, 8, 8][v]) for v in range(9)] + [(516, 772), (520, 776), (1032, 1544), (1288, 1800)]
XOF = [XV[min(4 * (r >> 3) + (r & 3), 12)][(r >> 2) & 1] for r in range(32)]
ALPHA = {7: 0, 8: 1, 1: 2, 2: 3, 3: 4, 4: 5, 5: 6, 6: 7}


def mu(g, e):
    return 16 * (g >> 1) + 4 * (g & 1) + 2 * (e >> 2) + 8 * (1 - ((e >> 1) & 1)) + (e & 1)


def t1_dword(copy, r, n):
    return 68 * (1 + ALPHA[r]) + n if copy == 0 else 68 * (9 + ALPHA[r]) + 1 + n


S_U, S_OUT = 24, 28
S_WAVE, S_ROLE, S_CG, S_BASE, S_MA, S_UB = 32, 33, 34, 35, 36, 37
S_T = 38
S_SELLO, S_SELHI, S_MB, S_HIMASK = 48, 49, 50, 51
S_L0, S_L032 = 52, 54
S_TILE = 56
S_KN = 57
S_QD = 58
S_UFULL = 96
S_STAMP = 60

(V_LANE, V_UF, V_K1A, V_K1B, V_K2, V_K3, V_SW, V_SR, V_OUT, V_ZERO, V_SR2,
 V_UL2, V_UL3, V_USW, V_BR,
 V_LP, V_YR, V_XR, V_DSK,
 V_EW, V_ESEL, V_T3W, V_FREE) = range(1, 24)
V_US = 24
V_BAND = 28
V_ACC = 56
V_KD = 76
V_K2F = 144
V_K3F = 168
V_PK = 184
V_D = 208
V_G = 224
V_TT = 248
V_URAW = [56, 60, 240, 244]
V_PAR = 72
V_CC = 80
V_W = 86
V_FR = 144
V_TMP = 224


def edge_list():
    Z, A_, B_, K0 = 0x0c0c, 0x0504, 0x0302, 0x0100
    tapsel = lambda t: K0 if t == 0 else A_ if 512 <= t <= 514 else B_ if 515 <= t <= 517 else Z
    need = {}
    for s_ in range(17):
        for l in range(64):
            f, g = l & 15, l >> 4
            for beta in range(2):
                tau = f + 5 + 32 * s_ - 16 * (g >> 1) - 4 * (g & 1) - 2 * beta
                n = (tau - 1) >> 3
                r = tau - 8 * n
                cp = (n - 1) & 1
                for nn in (n - 1, n):
                    if not 0 <= nn < 64:
                        t = 8 * nn + r
                        sel = tapsel(t) | (tapsel(t - 1) << 16)
                        dw = t1_dword(cp, r, nn)
                        assert need.setdefault(dw, sel) == sel
    data = {t1_dword(cp, r, n) for cp in range(2) for r in ALPHA for n in range(64)}
    assert not data & set(need)
    e = sorted((dw, sel) for dw, sel in need.items() if not 64 <= dw < 68)
    assert len(e) <= 64
    return e + [e[-1]] * (64 - len(e))


EDGE = edge_list()


def lane_consts(l):
    c, h, f, g = l & 31, l >> 5, l & 15, l >> 4

    def k1(beta):
        tau = f + 5 - 16 * (g >> 1) - 4 * (g & 1) - 2 * beta
        n = (tau - 1) >> 3
        return 4 * t1_dword((n - 1) & 1, tau - 8 * n, n - 1)
    a2 = 8 * (f - 4 * g + 12)
    d = (l & 15) >> 1
    pos = 2 * (d & 3) + (1 - (d >> 2))
    return {
        V_YR: ROW * c + 16 * h,
        V_XR: ROW * (32 + XROW[XOF[c]]) + 16 * h,
        V_K1A: k1(0),
        V_K1B: k1(1),
        V_K2: T2 + (a2 if a2 % 16 == 0 else a2 + T2B),
        V_K3: T3 + 4 * (f - 4 * g + 12),
        V_EW: 4 * EDGE[l][0],
        V_T3W: T3 + 60 + 128 * h + 2 * c,
        V_SW: STG + 144 * g + 8 * f,
        V_UF: 32 * f + 16 * g,
        V_USW: (4128 if l < 16 else 0) + 4 * pos + 2 * (l & 1),
        V_SR: (f >> 2) * RS + STG + 144 * (f & 3) + 8 * (g & 1),
    }


LC_ORDER = [V_YR, V_XR, V_USW, V_UF, V_K1A, V_K1B, V_K2, V_K3, V_EW, V_T3W, V_SW, V_SR]
LC_BASE = {V_UF: S_UB, V_USW: S_UB, V_SR: S_QD}


def tables():
    words = []
    for half in range(2):
        for l in range(64):
            lc = lane_consts(l)
            v = [lc[r] for r in LC_ORDER] + [0, 0, EDGE[l][1] & 0xffff, EDGE[l][1] >> 16]
            assert all(0 <= x < 65536 for x in v) and len(v) == 16
            for q in range(4):
                k = 8 * half + 2 * q
                words.append(v[k] | (v[k + 1] << 16))
    for (lo, hi, one) in [(6, 10, 0x3f80), (11, 13, 0x3f80), (14, 18, 0x3f80), (19, 21, 0x3f80), (5, 11, 0x3f80), (12, 20, 0x3f80),
                          (5, 5, 1)]:
        for l in range(64):
            f, g = l & 15, l >> 4
            e = [one if lo <= f + 21 - mu(g, k) <= hi else 0 for k in range(8)]
            words += [e[2 * q] | (e[2 * q + 1] << 16) for q in range(4)]
    s = ''
    for k in range(0, len(words), 8):
        s += '.long ' + ', '.join(f'0x{w:08x}' for w in words[k:k + 8]) + '\n'
    return s


def gen(opt):
    a = Asm()
    stamp_n = [0]

    def stamp(a, late=False, always=False):
        if opt.get('stamps') and (always or (opt.get('stamps') == 2) == late or opt.get('stamps') == 3):
            a.raw(f'    {"s_memrealtime" if opt.get("rt") else "s_memtime"} {sr(S_STAMP + 2*stamp_n[0], 2)}')
            stamp_n[0] += 1

    def ampstamp(k):
        if opt.get('amp') and opt.get('ampat', 0) == k:
            a.raw(f'    s_memrealtime s[100:101]')

    if opt.get('stamps') or opt.get('spin') or opt.get('amp'):
        a.raw(f'    s_memrealtime {sr(90, 2)}')
    stamp(a, always=True)
    a(f's_load_dwordx16 s[4:19], s[0:1], 0')
    a(f's_load_dwordx4 s[20:23], s[0:1], 64')
    if opt.get('stamps'):
        a(f's_load_dwordx2 s[94:95], s[0:1], 88')
    a('s_cmp_ge_u32 s2, 256')
    a('s_cbranch_scc1 L_end')
    TB = V_TMP
    X0, X1, X2, X3 = V_TMP + 8, V_TMP + 9, V_TMP + 10, V_TMP + 11
    a(f's_getpc_b64 {sr(S_T, 2)}')
    a.label('L_pc')
    a(f'''
    v_readfirstlane_b32 s{S_WAVE}, v0
    v_and_b32 v{V_LANE}, 63, v0
    s_add_u32 s{S_T+2}, s{S_T}, L_tbl-L_pc
    s_addc_u32 s{S_T+3}, s{S_T+1}, 0
    v_lshlrev_b32 v{V_BR}, 4, v{V_LANE}
    s_lshl_b32 s{S_T+4}, s{S_WAVE}, 4
    s_lshr_b32 s{S_WAVE}, s{S_WAVE}, 6
    global_load_dwordx4 {vr(TB, 4)}, v{V_BR}, {sr(S_T+2, 2)}
    global_load_dwordx4 {vr(TB+4, 4)}, v{V_BR}, {sr(S_T+2, 2)} offset:1024
    s_add_u32 m0, s{S_T+4}, {BAND - 2048}
    s_min_u32 s{S_T+4}, s{S_T+4}, {6*1024}
    v_add_u32 v{X0}, s{S_T+4}, v{V_BR}
    global_load_lds_dwordx4 v{X0}, {sr(S_T+2, 2)} offset:2048
    ''')
    T_H1 = sum(p << (4 * p) for p in range(16))
    if opt.get('worder'):
        wo = [int(c) for c in '%04d' % opt['worder']]
        T_H1 = sum((4 * wo[p >> 2] + (p & 3)) << (4 * p) for p in range(16))
    h0 = [0, 4, 8, 12, 1, 2, 3, 5, 6, 7, 9, 10, 11, 13, 14, 15]
    T_H0 = sum(v << (4 * p) for p, v in enumerate(h0))
    UL0, UL1 = V_TMP + 12, V_TMP + 13
    a(f"""
    s_and_b32 s{S_T+2}, s2, 7
    s_bfe_u32 s{S_ROLE}, s2, 0x10005
    s_bfe_u32 s{S_T+4}, s2, 0x20003
    s_lshr_b32 s{S_T+5}, s2, 6
    s_lshl2_add_u32 s{S_T+4}, s{S_T+5}, s{S_T+4}
    s_lshl4_add_u32 s{S_T+2}, s{S_T+2}, s{S_T+4}
    s_lshl_b32 s{S_CG}, s{S_T+2}, 4
    s_lshl3_add_u32 s{S_T+2}, s{S_T+2}, s{S_WAVE}
    s_lshl_b32 s{S_T+5}, s{S_T+2}, 8
    s_lshl_b32 s{S_T+2}, s{S_T+2}, 1
    v_lshl_add_u32 v{X1}, v{V_LANE}, 2, s{S_T+5}
    v_mov_b32 v{X2}, s{S_T+2}
    v_lshl_add_u32 v{X3}, v{V_LANE}, 11, v{X2}
    v_add_u32 v{X3}, {2043*2048}, v{X3}
    v_and_b32 v{V_LP}, 1, v{V_LANE}
    v_xor_b32 v{V_LP}, 1, v{V_LP}
    v_bfe_u32 v{X0}, v{V_LANE}, 1, 2
    v_lshl_add_u32 v{V_LP}, v{V_LP}, 2, v{X0}
    v_and_or_b32 v{V_LP}, v{V_LANE}, 56, v{V_LP}
    s_mov_b32 s{S_U+3}, 0x00020000
    s_mov_b32 s{S_UFULL+3}, 0x00020000
    s_mov_b32 s{S_UFULL+2}, 4194304
    s_mov_b32 s{S_T+6}, {T_H1 & 0xffffffff}
    s_mov_b32 s{S_T+7}, {T_H1 >> 32}
    s_cmp_eq_u32 s{S_ROLE}, 0
    s_cselect_b32 s{S_U+2}, {1280*2048}, s{S_UFULL+2}
    s_cselect_b32 s{S_T+6}, {T_H0 & 0xffffffff}, s{S_T+6}
    s_cselect_b32 s{S_T+7}, {T_H0 >> 32}, s{S_T+7}
    s_lshl_b32 s{S_T+2}, s{S_WAVE}, 2
    s_lshr_b32 s{S_T+6}, s{S_T+6}, s{S_T+2}
    s_lshr_b32 s{S_T+7}, s{S_T+7}, s{S_T+2}
    s_bfe_u32 s{S_T+3}, s{S_T+4}, 0x20001
    s_xor_b32 s{S_T+4}, s{S_T+4}, s{S_ROLE}
    s_and_b32 s{S_T+4}, s{S_T+4}, 1
    s_add_u32 s{S_T+8}, s{S_T+6}, s{S_T+3}
    s_and_b32 s{S_T+8}, s{S_T+8}, 3
    s_and_b32 s{S_T+2}, s{S_T+6}, 12
    s_or_b32 s{S_T+8}, s{S_T+8}, s{S_T+2}
    s_lshl_b32 s{S_T+5}, s{S_T+4}, 11
    s_add_u32 s{S_T+5}, s{S_T+5}, s{S_CG}
    s_lshl_b32 s{S_T+2}, s{S_T+8}, 18
    s_add_u32 s{S_T+2}, s{S_T+2}, s{S_T+5}
    s_xor_b32 s{S_T+9}, s{S_T+2}, 2048
    s_sub_u32 s{S_T+2}, s{S_T+2}, {5*2048}
    s_sub_u32 s{S_T+9}, s{S_T+9}, {5*2048}
    v_lshl_add_u32 v{UL0}, v{V_LP}, 12, s{S_T+2}
    v_lshl_add_u32 v{UL1}, v{V_LP}, 12, s{S_T+9}
    """)
    a(f'global_load_ushort v{V_PAR+6}, v{X2}, s[18:19]')
    for k in range(6):
        a(f'global_load_dword v{V_PAR+k}, v{X1}, s[{6+2*k}:{7+2*k}]')
        if k == 1 and opt.get('split', 1):
            a('s_barrier')
    a(f'global_load_ushort v{V_PAR+7}, v{X2}, s[20:21]')
    a(f"""
    s_mov_b32 s{S_U}, s4
    s_mov_b32 s{S_U+1}, s5
    buffer_load_ushort v{V_US}, v{X3}, {sr(S_U, 4)}, 0 offen
    s_mov_b32 s{S_UFULL}, s4
    s_mov_b32 s{S_UFULL+1}, s5
    """)
    stamp(a)
    a('s_barrier')

    def uload(k):
        if opt.get('nou', 0) > 3 - k:
            return
        a(f'buffer_load_dwordx4 {vr(V_URAW[k], 4)}, v{[UL0, UL1, V_UL2, V_UL3][k]}, {sr(S_UFULL if k == 0 else S_U, 4)}, 0 offen')
    if not opt.get('udelay', 0):
        uload(0)
        uload(1)
    a(f"""
    s_add_u32 s{S_T+9}, s{S_T+7}, s{S_T+3}
    s_and_b32 s{S_T+9}, s{S_T+9}, 3
    s_and_b32 s{S_T+2}, s{S_T+7}, 12
    s_or_b32 s{S_T+9}, s{S_T+9}, s{S_T+2}
    s_lshl_b32 s{S_T+2}, s{S_T+9}, 18
    s_add_u32 s{S_T+2}, s{S_T+2}, s{S_T+5}
    s_xor_b32 s{S_T+3}, s{S_T+2}, 2048
    s_sub_u32 s{S_T+2}, s{S_T+2}, {5*2048}
    s_sub_u32 s{S_T+3}, s{S_T+3}, {5*2048}
    v_lshl_add_u32 v{V_UL2}, v{V_LP}, 12, s{S_T+2}
    v_lshl_add_u32 v{V_UL3}, v{V_LP}, 12, s{S_T+3}
    s_add_u32 s{S_MA}, s{S_T+8}, 4
    s_and_b32 s{S_T+6}, s{S_T+6}, 3
    s_cmp_ge_u32 s{S_T+8}, 12
    s_cselect_b32 s{S_MA}, s{S_T+6}, s{S_MA}
    s_add_u32 s{S_MB}, s{S_T+9}, 4
    s_and_b32 s{S_T+7}, s{S_T+7}, 3
    s_cmp_ge_u32 s{S_T+9}, 12
    s_cselect_b32 s{S_MB}, s{S_T+7}, s{S_MB}
    s_cmp_eq_u32 s{S_ROLE}, 0
    s_cselect_b32 s{S_MA}, s{S_MA}, s{S_T+8}
    s_cselect_b32 s{S_MB}, s{S_MB}, s{S_T+9}
    s_lshl_b32 s{S_MA}, s{S_MA}, 8
    s_lshl_b32 s{S_MB}, s{S_MB}, 8
    s_add_u32 s{S_MA}, s{S_MA}, {UT+32}
    s_add_u32 s{S_MB}, s{S_MB}, {UT+32}
    s_mov_b32 s{S_SELLO}, 0x05040100
    s_cmp_eq_u32 s{S_T+4}, 1
    s_cselect_b32 s{S_SELLO}, 0x01000504, s{S_SELLO}
    s_add_u32 s{S_SELHI}, s{S_SELLO}, 0x02020202
    s_mov_b32 s{S_OUT}, s22
    s_mov_b32 s{S_OUT+1}, s23
    s_mov_b32 s{S_OUT+2}, 4194304
    s_mov_b32 s{S_OUT+3}, 0x00020000
    s_mul_i32 s{S_UB}, s{S_WAVE}, {US}
    s_add_u32 s{S_UB}, s{S_UB}, {UT}
    s_mov_b32 m0, s{S_UB}
    v_mov_b32 v{V_ZERO}, 0
    s_mul_i32 s{S_BASE}, s{S_WAVE}, {RS}
    ds_write_addtid_b32 v{V_ZERO} offset:{32+512}
    ds_write_addtid_b32 v{V_ZERO} offset:{32+768}
    s_mov_b32 m0, s{S_BASE}
    v_mov_b32 v{X0}, 0x3f80
    ds_write_addtid_b32 v{V_ZERO} offset:16
    ds_write_addtid_b32 v{X0} offset:0
    ds_write_addtid_b32 v{V_ZERO} offset:{T2}
    ds_write_addtid_b32 v{V_ZERO} offset:{T2+256}
    ds_write_addtid_b32 v{V_ZERO} offset:{T2+640}
    s_mov_b32 s{S_HIMASK}, 0xffff0000
    s_mov_b64 {sr(S_L0, 2)}, 1
    s_lshl_b32 s{S_QD}, s{S_WAVE}, 4
    s_lshl_b32 s{S_T+5}, s{S_WAVE}, 16
    s_add_u32 s{S_T+5}, s{S_T+5}, s{S_CG}
    v_cmp_gt_u32 vcc, 32, v{V_LANE}
    v_lshl_add_u32 v{V_OUT}, v{V_LANE}, 11, s{S_T+5}
    v_cndmask_b32 v{V_OUT}, -1, v{V_OUT}, vcc
    """)
    for k, r in enumerate(LC_ORDER):
        a(f'v_add_u32_sdwa v{r}, s{LC_BASE.get(r, S_BASE)}, v{TB + k//2} dst_sel:DWORD dst_unused:UNUSED_PAD '
          f'src0_sel:DWORD src1_sel:WORD_{k & 1}')
    a(f'v_mov_b32 v{V_ESEL}, v{TB+7}')
    a(f'v_add_u32 v{V_SR2}, {4*RS}, v{V_SR}')
    a.wait(vm=len(a.vm) - 1)
    a('s_barrier')
    for k in range(7):
        a(f'ds_read_b128 {vr(V_BAND+4*k, 4)}, v{V_BR} offset:{BAND + 1024*k}')
    stamp(a)

    DT = V_CC + 4
    a(f'v_lshlrev_b32 v{DT}, 16, v{V_PAR+6}')
    ampstamp(1)
    if opt.get('udelay', 0) == 1:
        uload(0)
        uload(1)
    a(f'''
    v_mul_f32 v{DT}, 0x3fb8aa3b, v{DT}
    v_exp_f32 v{DT}, v{DT}
    v_cvt_pk_bf16_f32 v{DT}, v{DT}, v{DT}
    v_lshlrev_b32 v{DT}, 16, v{DT}
    v_mul_f32 v{V_CC}, 0x3fb8aa3b, v{DT}
    v_mul_f32 v{V_CC+1}, 0.15915494, v{DT}
    v_mul_f32 v{V_CC+2}, 0x43800000, v{V_CC}
    v_mul_f32 v{V_CC+3}, 0x43800000, v{V_CC+1}
    ''')
    stamp(a)

    names = ['z', 'z2', 'B', 'C', 'E1', 'E2', 'E4', 'EH', 'P0', 'P1', 'P2', 'P3', 'P4', 'P5', 'P6', 'P8',
             'Q0', 'Q1', 'Q2', 'Q3', 'M', 'E8', 't0', 't1', 't2', 't3']
    R = {n: V_W + 2 * k for k, n in enumerate(names)}
    assert V_W + 2 * len(names) <= V_FR
    cv = [V_TT + k for k in range(4)]
    cnt = [0]

    def p(n):
        return vr(R[n], 2)

    def cmul(d, x, y):
        t = 't%d' % (cnt[0] % 4)
        cnt[0] += 1
        return [f'v_pk_mul_f32 {p(t)}, {p(x)}, {p(y)} op_sel_hi:[1,0]',
                f'v_pk_fma_f32 {p(d)}, {p(x)}, {p(y)}, {p(t)} op_sel:[1,1,0] op_sel_hi:[0,1,1] neg_lo:[1,0,0]']

    def cmul_np(d, x, y):
        t = R['t%d' % (cnt[0] % 4)]
        cnt[0] += 1
        x, y, d = R[x], R[y], R[d]
        return [f'v_mul_f32 v{t}, v{x}, v{y}', f'v_mul_f32 v{t+1}, v{x+1}, v{y}',
                f'v_fma_f32 v{d}, -v{x+1}, v{y+1}, v{t}', f'v_fma_f32 v{d+1}, v{x}, v{y+1}, v{t+1}']

    def put(n, row, neg):
        c = cv[cnt[0] % len(cv)]
        return [f'v_cvt_pk_bf16_f32 v{c}, v{R[n]}, {"-" if neg else ""}v{R[n]+1}',
                f'ds_write_addtid_b32 v{c} offset:{row*ROW}']

    def ux(d, x, y, val):
        return cmul(d, x, y) + put(d, 32 + XROW[val], True)

    def uy(d, x, y, val):
        return cmul(d, x, y) + put(d, val // 8, False)

    def setup(ps, packed):
        o = []

        def unpack(k, n, h):
            if ps == 0:
                o.append(f'v_lshlrev_b32 v{R[n]+h}, 16, v{V_PAR+k}')
            else:
                o.append(f'v_and_b32 v{R[n]+h}, s{S_HIMASK}, v{V_PAR+k}')
        z, z2, B, E1, EH = R['z'], R['z2'], R['B'], R['E1'], R['EH']
        unpack(0, 'z', 0); unpack(1, 'z', 1)
        if packed:
            o += [f"v_pk_mul_f32 {p('z2')}, {p('z')}, {vr(V_CC+2, 2)}",
                  f"v_pk_mul_f32 {p('z')}, {p('z')}, {vr(V_CC, 2)}"]
        else:
            o += [f'v_mul_f32 v{z2}, v{z}, v{V_CC+2}', f'v_mul_f32 v{z2+1}, v{z+1}, v{V_CC+3}',
                  f'v_mul_f32 v{z}, v{z}, v{V_CC}', f'v_mul_f32 v{z+1}, v{z+1}, v{V_CC+1}']
        o += [f'v_fract_f32 v{z+1}, v{z+1}', f'v_fract_f32 v{z2+1}, v{z2+1}',
              f'v_exp_f32 v{z}, v{z}', f'v_cos_f32 v{E1}, v{z+1}', f'v_sin_f32 v{E1+1}, v{z+1}',
              f'v_exp_f32 v{z2}, v{z2}', f'v_cos_f32 v{EH}, v{z2+1}', f'v_sin_f32 v{EH+1}, v{z2+1}']
        if packed:
            o += [f"v_pk_mul_f32 {p('E1')}, {p('E1')}, {p('z')} op_sel_hi:[1,0]",
                  f"v_pk_mul_f32 {p('EH')}, {p('EH')}, {p('z2')} op_sel_hi:[1,0]"]
            o += cmul('E2', 'E1', 'E1') + cmul('E4', 'E2', 'E2')
        else:
            o += [f'v_mul_f32 v{E1}, v{E1}, v{z}', f'v_mul_f32 v{E1+1}, v{E1+1}, v{z}',
                  f'v_mul_f32 v{EH}, v{EH}, v{z2}', f'v_mul_f32 v{EH+1}, v{EH+1}, v{z2}']
            o += cmul_np('E2', 'E1', 'E1') + cmul_np('E4', 'E2', 'E2')
        na = len(o)
        unpack(2, 'B', 0); unpack(3, 'B', 1); unpack(4, 'C', 0); unpack(5, 'C', 1)
        if packed:
            o += [f"v_pk_mul_f32 {p('B')}, {p('B')}, {vr(DT, 2)} op_sel_hi:[1,0]"]
        else:
            o += [f'v_mul_f32 v{B}, v{B}, v{DT}', f'v_mul_f32 v{B+1}, v{B+1}, v{DT}']
        return o[:na], o[na:]

    def units():
        U = [uy('E8', 'E4', 'E4', 8), uy('Q1', 'E8', 'E8', 16), uy('Q2', 'Q1', 'E8', 24), uy('M', 'Q1', 'Q1', 32)]
        for st in range(1, 8):
            U += [uy('Q0', 'E8' if st == 1 else 'Q0', 'M', 8 + 32 * st), uy('Q1', 'Q1', 'M', 16 + 32 * st),
                  uy('Q2', 'Q2', 'M', 24 + 32 * st)]
            if st < 7:
                U.append(uy('Q3', 'M' if st == 1 else 'Q3', 'M', 32 + 32 * st))
        assert len(U) == 31
        U += [ux('P0', 'C', 'B', 0), ux('P1', 'P0', 'E1', 1), ux('P2', 'P0', 'E2', 2), ux('P3', 'P1', 'E2', 3),
              ux('P4', 'P0', 'E4', 4), ux('P5', 'P1', 'E4', 5), ux('P6', 'P2', 'E4', 6), ux('P5', 'P3', 'E4', 7),
              ux('P8', 'P0', 'E8', 8), ux('P0', 'P0', 'EH', 256), ux('P2', 'P2', 'EH', 258), ux('P4', 'P4', 'EH', 260),
              ux('P6', 'P6', 'EH', 262), ux('P8', 'P8', 'EH', 264), ux('P4', 'P4', 'EH', 516),
              ux('P8', 'P8', 'EH', 520), ux('P4', 'P4', 'EH', 772), ux('P8', 'P8', 'EH', 776), ux('P8', 'P8', 'EH', 1032)]
        tail = [ux('P8', 'P8', 'EH', 1288), ux('P8', 'P8', 'EH', 1544), ux('P8', 'P8', 'EH', 1800)]
        return U, tail

    def yread(s):
        return f'ds_read_b128 {vr(V_FR+8*s+4, 4)}, v{V_YR} offset:{32*s}'

    def opreads():
        o = []
        for s in range(8):
            o.append(Item(f'ds_read_b128 {vr(V_FR+8*s, 4)}, v{V_XR} offset:{32*s}', mw=['KG']))
            if not opt.get('yearly', 0):
                o.append(Item(yread(s), mw=['KG']))
        return o

    def kmfma(ps):
        return [Item(f'v_mfma_f32_32x32x16_bf16 {vr(V_D, 16)}, {vr(V_FR+8*s, 4)}, {vr(V_FR+8*s+4, 4)}, '
                     f'{"0" if (ps == 0 and s == 0) else vr(V_D, 16)}') for s in range(8)]

    def main(ps, extra):
        U, tail = units()
        a.raw('.p2align 3')
        pend = []
        nb = opt.get('wb', 1)
        lad = opt.get('klad', 0)
        for k, u_ in enumerate(U):
            if extra.get(k) or len(pend) >= nb:
                for ln in pend:
                    a(ln)
                pend = []
            for f in extra.get(k, ()):
                f()
            if lad and k % lad == 0:
                a(f's_setprio {3 - (k // lad) % 4}')
                a('s_nop 0')
            for ln in u_[:-1]:
                a(ln)
            pend.append(u_[-1])
        for ln in pend:
            a(ln)
        if opt.get('skip3', 1):
            a(f's_cmp_eq_u32 s{S_ROLE}, 0')
            a(f's_cbranch_scc1 L_skip{ps}')
        keep = list(a.lgkm)
        for u_ in tail:
            for ln in u_:
                a(ln)
        if opt.get('skip3', 1):
            a.label(f'L_skip{ps}')
            a.lgkm = keep + [[]]
            a.lgkm.pop(len(keep) - 1)

    def extras(ps):
        ex = {}
        if opt.get('yearly', 0):
            for s in range(8):
                ex.setdefault(33 + 2 * s, []).append(lambda s=s: a(yread(s)))
        for k, key in ((2, 'u2'), (3, 'u3')):
            pos_ = opt.get(key, {2: 100, 3: 125}[k])
            if pos_ // 100 == ps:
                ex.setdefault(pos_ % 100, []).append(lambda k=k: uload(k))
        return ex

    sa, sb = setup(0, True)
    for ln in sa:
        a(ln)
    ampstamp(2)
    if opt.get('udelay', 0) == 2:
        uload(0)
        uload(1)
    a.wait(lgkm=0)
    a('s_barrier')
    stamp(a)
    ex = extras(0)

    def bc0():
        stamp(a)
        for ln in sb:
            a(ln)
        a(f'v_lshlrev_b32 v{V_DSK}, 16, v{V_PAR+7}')
        a(f'v_cndmask_b32 v{V_DSK}, 0, v{V_DSK}, {sr(S_L0, 2)}')
        a(f'ds_write_b16 v{V_USW}, v{V_US}')
        a.raw('.p2align 3')
        stamp(a)
    ex.setdefault(31, []).insert(0, bc0)
    main(0, ex)
    stamp(a)
    sa, sb = setup(1, False)
    if opt.get('barm', 0):
        a('s_barrier')
    schedule(a, opreads() + [Item(x) for x in sa + sb] + kmfma(0), verbose=True, group=opt.get('grp', 1))
    if opt.get('bar1', 1):
        a('s_barrier')
    stamp(a)
    main(1, extras(1))
    ampstamp(3)
    stamp(a, always=True)
    if opt.get('uprobe'):
        a.wait(vm=2)
        stamp(a, always=True)
        a.wait(vm=0)
        ampstamp(4)
        stamp(a, always=True)
    if opt.get('barm', 0):
        a('s_barrier')

    a(f's_cmp_eq_u32 s{S_ROLE}, 0')
    a('s_cbranch_scc0 L_role1')
    b = a.fork()
    n0 = stamp_n[0]
    conv(a, 0, opt, stamp, opreads(), kmfma(1))
    finish(a, opt, stamp_n[0])
    stamp_n[0] = n0
    b.label('L_role1')
    conv(b, 1, opt, stamp, opreads(), kmfma(1))
    finish(b, opt, stamp_n[0])
    body = a.text() + b.text()
    return body, a, b


def finish(a, opt, nst):
    if opt.get('spin') or opt.get('amp'):
        lab = f'L_spin{id(a)}'
        a.wait(vm=0, lgkm=0)
        if opt.get('amp'):
            if opt.get('ampat'):
                a.raw('    s_sub_u32 s96, s100, s90')
                a.raw(f'    s_mul_i32 s96, s96, {opt["amp"]}')
                a.raw(f'    s_add_u32 s96, s96, 3000')
            else:
                a.raw(f'    s_memrealtime s[92:93]')
                a.raw('    s_waitcnt lgkmcnt(0)')
                a.raw('    s_sub_u32 s96, s92, s90')
                a.raw(f'    s_mul_i32 s96, s96, {opt["amp"]}')
        else:
            a.raw(f'    s_mov_b32 s96, {opt["spin"]}')
        a.label(lab)
        a.raw(f'    s_memrealtime s[92:93]')
        a.raw('    s_waitcnt lgkmcnt(0)')
        a.raw('    s_sub_u32 s92, s92, s90')
        a.raw('    s_cmp_lt_u32 s92, s96')
        a.raw(f'    s_cbranch_scc1 {lab}')
    if opt.get('stamps'):
        a.wait(vm=0, lgkm=0)
        a.raw(f'    {"s_memrealtime" if opt.get("rt") else "s_memtime"} {sr(S_STAMP + 2*nst, 2)}')
        a.raw(f'    s_memrealtime {sr(92, 2)}')
        a.raw('    s_waitcnt lgkmcnt(0)')
        a(f'v_mov_b32 v2, 0')
        for k in range(nst + 1):
            a(f's_sub_u32 s{S_T}, s{S_STAMP+2*k}, s{S_STAMP}')
            a(f'v_writelane_b32 v2, s{S_T}, {k}')
        a(f'v_writelane_b32 v2, s90, 14')
        a(f'v_writelane_b32 v2, s92, 15')
        a(f'v_writelane_b32 v2, s{S_ROLE}, 16')
        a(f's_lshl_b32 s{S_T}, s2, 3')
        a(f's_add_u32 s{S_T}, s{S_T}, s{S_WAVE}')
        a(f's_lshl_b32 s{S_T}, s{S_T}, 8')
        a(f'v_lshl_add_u32 v3, v{V_LANE}, 2, s{S_T}')
        a(f'global_store_dword v3, v2, s[94:95]')
    a('s_endpgm')


SEQ = {
    1: [
        [('T23',), ('T1',), ('KF',), ('B3', 0), ('G', 2), ('B2', 1), ('B3', 1), ('D3', 0, 5), ('D3', 0, 6), ('D3', 0, 7),
         ('B2', 2), ('B3', 2), ('FX', 5), ('G', 3), ('D2', 1, 5), ('D3', 1, 5), ('D3', 1, 6), ('D3', 1, 7), ('TRB',),
         ('B2', 3), ('FX', 6), ('D2', 2, 5), ('D2', 2, 6), ('D3', 2, 6), ('D3', 2, 7), ('D2', 3, 5), ('D2', 3, 6), ('G', 4),
         ('W', 24, 40), ('OUT', 5), ('B2', 4), ('G', 5), ('W', 41, 44), ('D2', 4, 6), ('W', 45, 48), ('OUT', 6),
         ('D2', 3, 7), ('B2', 5), ('B3', 3), ('FX', 7), ('D2', 4, 7), ('W', 49, 52), ('D2', 5, 7), ('D3', 3, 7), ('W', 53, 56), ('OUT', 7)],
    ],
    0: [
        [('T1',), ('T23',), ('KF',), ('B2', 0), ('B2', 1), ('B3', 0), ('W', -8, -5), ('D2', 0, 2), ('W', -4, 0), ('OUT', 0), ('TRB',),
         ('W', 1, 8), ('OUT', 1), ('G', 2), ('W', 9, 16), ('OUT', 2), ('D2', 0, 3), ('D2', 1, 3), ('W', 17, 24), ('OUT', 3),
         ('B2', 2), ('D2', 0, 4), ('D2', 1, 4), ('D3', 0, 4), ('FX', 4), ('W', 25, 28), ('D2', 2, 4), ('W', 29, 32), ('OUT', 4)],
        [('T23',), ('T1',), ('KF',), ('B2', 0), ('B2', 1), ('B3', 0), ('D2', 0, 2), ('D2', 0, 3), ('D2', 1, 3), ('W', -8, 0), ('OUT', 0), ('TRB',),
         ('W', 1, 8), ('OUT', 1), ('G', 2), ('W', 9, 16), ('OUT', 2), ('W', 17, 24), ('OUT', 3),
         ('B2', 2), ('D2', 0, 4), ('D2', 1, 4), ('D3', 0, 4), ('FX', 4), ('W', 25, 28), ('D2', 2, 4), ('W', 29, 32), ('OUT', 4)],
        [('T23',), ('T1',), ('KF',), ('B2', 0), ('B2', 1), ('B3', 0), ('D2', 0, 2), ('D2', 0, 3), ('D2', 1, 3), ('D2', 0, 4), ('D2', 1, 4),
         ('D3', 0, 4), ('FX', 4), ('TRB',), ('W', -8, 0), ('OUT', 0),
         ('W', 1, 8), ('OUT', 1), ('G', 2), ('W', 9, 16), ('OUT', 2), ('W', 17, 24), ('OUT', 3),
         ('B2', 2), ('W', 25, 28), ('D2', 2, 4), ('W', 29, 32), ('OUT', 4)],
    ],
}


def conv(a, role, opt, stamp, opreads, kmfma):
    tiles = [0, 1, 2, 3, 4] if role == 0 else [5, 6, 7]
    uoff = 1024 if role == 0 else 0
    acc = {it: V_ACC + 4 * k for k, it in enumerate(tiles)}
    started = set()
    L = []

    def I(text, **kw):
        for ln in text.strip().split('\n'):
            if ln.strip():
                L.append(Item(ln.strip(), **kw))

    def mf(d, x, y, first):
        I(f'v_mfma_f32_16x16x32_bf16 {vr(d, 4)}, {vr(x, 4)}, {vr(y, 4)}, {"0" if first else vr(d, 4)}')

    def accum(it, x, y):
        mf(acc[it], x, y, it not in started)
        started.add(it)

    def mark():
        if opt.get('stamps'):
            last = [x for x in L if x.kind == 'mfma'][-1]
            tag = f'stamp{len(L)}'
            last.mw.add(tag)
            L.append(Item(fn=lambda: stamp(a, always=True), mw=[tag, 'stamps']))

    mt2 = sorted({it - d for it in tiles for d in (2, 3, 4) if it - d >= 0})
    mt3 = sorted({it - d for it in tiles for d in (4, 5, 6, 7) if it - d >= 0})
    mts = sorted(set(mt2) | set(mt3))
    d3 = sorted({it - mt for it in tiles for mt in mt3 if 4 <= it - mt <= 7})
    if role == 1:
        rawseq = [232, 68, 76] * 3 + [232, 68, 240] * 3
        G = {0: V_G, 1: V_G + 4, 2: V_G, 3: V_G + 4, 4: V_G, 5: V_G}
        pk2 = {mt: V_PK + 12 * (mt % 2) for mt in mt2}
        pk3 = {mt: V_PK + 12 * (mt % 2) + 8 for mt in mt3}
        tA = 1018
    else:
        rawseq = [232, 176, 200, 232, 176, 232, 176]
        G = {0: V_G, 1: V_G + 4, 2: V_G + 4}
        pk2 = {0: V_PK, 1: V_PK + 8, 2: V_PK + 16}
        pk3 = {0: V_K3F + 4}
        tA = 506
    ring = [12, 16, V_D + 4, V_D, V_D + 12, V_D + 8, 20][:opt.get('ring', 7)]
    OUTR = V_TT

    def gread(mt):
        I(f'ds_read_b128 {vr(G[mt], 4)}, v{V_UF} offset:{uoff + 512*mt}', mr=['pubA' if 256 * mt + 250 <= tA else 'pubB'])
    D = V_D
    TA, TB, TC, TD = V_TT + 4, V_TT + 5, V_TT + 6, V_TT + 7
    KF = V_BAND + 24

    def t23():
        I(f"""
        v_mov_b32 v{TA}, v{D+10}
        v_cvt_pk_bf16_f32 v{TB}, v{D+11}, v{D+12}
        v_cvt_pk_bf16_f32 v{TC}, -v{D+10}, v{V_ZERO}
        v_mov_b32_dpp v{TA}, v{D+9} wave_shl:1 row_mask:0xf bank_mask:0xf
        v_cvt_pk_bf16_f32 v{TA}, v{D+10}, v{TA}
        """)
        I(f'ds_write_addtid_b32 v{TA} offset:{T2+120}', mw=['T23'])
        I(f'ds_write_addtid_b32 v{TA} offset:{T2+T2B+120}', mw=['T23'])
        I(f'ds_write_b16 v{V_T3W}, v{TB}', mw=['T23'])
        if role == 1:
            I(f'ds_write_b16_d16_hi v{V_T3W}, v{TB} offset:64', mw=['T23'])
        I(f'v_readlane_b32 s{S_KN}, v{TC}, 63')

    def kfix():
        for q in range(4):
            I(f'v_mul_u32_u24 v{KF+q}, s{S_KN}, v{KF+q}')

    k2_done, k3_done = set(), set()

    def k2read(dl):
        if dl in k2_done:
            return
        k2_done.add(dl)
        k = dl - 2
        for q in range(2):
            I(f'ds_read_b128 {vr(V_K2F+8*k+4*q, 4)}, v{V_K2} offset:{128*k + 16*q}', mr=['T23'])

    def k3read(dl):
        if dl in k3_done:
            return
        k3_done.add(dl)
        k = dl - 4
        I(f'ds_read2_b32 {vr(V_K3F+4*k, 2)}, v{V_K3} offset0:{16*k} offset1:{16*k+1}', mr=['T23'])
        I(f'ds_read2_b32 {vr(V_K3F+4*k+2, 2)}, v{V_K3} offset0:{16*k+2} offset1:{16*k+3}', mr=['T23'])

    def t1():
        for k, r in enumerate([8, 2, 3, 4, 5, 6, 7, 1]):
            t = V_TT + (k % 4)
            I(f'v_cvt_pk_bf16_f32 v{t}, v{D+r}, v{D+r-1}')
            I(f'ds_write_addtid_b32 v{t} offset:{4*t1_dword(0, r, 0)}', mr=['KG'], mw=['T1'])
            I(f'ds_write_addtid_b32 v{t} offset:{4*t1_dword(1, r, 0)}', mr=['KG'], mw=['T1'])
            if r == 8:
                I(f"""
                v_readlane_b32 s{S_T}, v{t}, 63
                v_cvt_pk_bf16_f32 v{TD}, v{D}, v{D+9}
                v_readlane_b32 s{S_T+1}, v{TD}, 0
                v_mov_b32 v{TD}, s{S_T}
                v_perm_b32 v{TD}, v{TD}, s{S_T+1}, v{V_ESEL}
                """)
        I(f'ds_write_b32 v{V_EW}, v{TD}', mr=['KG'], mw=['T1'])

    def kdread(s):
        I(f'ds_read_b64 {vr(V_KD+4*s, 2)}, v{V_K1A} offset:{16*s}', mr=['T1'])
        I(f'ds_read_b64 {vr(V_KD+4*s+2, 2)}, v{V_K1B} offset:{16*s}', mr=['T1'])

    ucount = [0]

    def unit(mt, b0, dst, stride):
        r = rawseq[ucount[0]]
        ucount[0] += 1
        mf(r, G[mt], V_BAND + 4 * b0, True)
        mf(r + 4, G[mt], V_BAND + 4 * b0 + 4, True)
        for jj in range(4):
            I(f'v_cvt_pk_bf16_f32 v{dst+stride*jj}, v{r+3-jj}, v{r+7-jj}')

    def token(t):
        k = t[0]
        if k == 'G':
            gread(t[1])
        elif k == 'B2':
            unit(t[1], 0, pk2[t[1]], 2)
            unit(t[1], 2, pk2[t[1]] + 1, 2)
        elif k == 'B3':
            unit(t[1], 4, pk3[t[1]], 1)
        elif k == 'D2':
            mt, it = t[1:]
            k2read(it - mt)
            accum(it, pk2[mt], V_K2F + 8 * (it - mt - 2))
            accum(it, pk2[mt] + 4, V_K2F + 8 * (it - mt - 2) + 4)
        elif k == 'D3':
            mt, it = t[1:]
            k3read(it - mt)
            accum(it, pk3[mt], V_K3F + 4 * (it - mt - 4))
        elif k == 'FX':
            accum(t[1], KF, G[t[1] - 4])
        elif k == 'W':
            for w in range(t[1], t[2] + 1):
                direct(w)
        elif k == 'KD':
            for s_ in t[1:]:
                if s_ not in kd_done:
                    kdread(s_)
                    kd_done.add(s_)
        elif k == 'T1':
            t1()
        elif k == 'T23':
            t23()
        elif k == 'KF':
            kfix()
        elif k == 'TRB':
            transpose(1)
        elif k == 'OUT':
            stage(t[1]); store(t[1])
        todo.discard(t)

    wlo = max(8 * tiles[0] - 16, -8)
    whi = 8 * tiles[-1]

    def stage(it):
        slot = tiles.index(it)
        t = V_US + 2 * (slot % 2)
        I(f'v_cvt_pk_bf16_f32 v{t}, v{acc[it]}, v{acc[it]+1}', prio=0)
        I(f'v_cvt_pk_bf16_f32 v{t+1}, v{acc[it]+2}, v{acc[it]+3}', prio=0)
        I(f'ds_write_b64 v{V_SW}, {vr(t, 2)} offset:{576*slot}', mr=['KG'], mw=[f'stg{it}'], prio=0)

    def store(it):
        slot = tiles.index(it)
        o = OUTR + 4 * (slot % 2)

        def fn():
            stamp(a, late=True)
            a.barrier()
        L.append(Item(fn=fn, mr=[f'stg{it}'], mw=['bar', f'pub{it}'], cost=8, delay=0 if it == tiles[-1] else opt.get('bdelay', 128)))
        I(f'ds_read_b64_tr_b16 {vr(o, 2)}, v{V_SR} offset:{576*slot}', mr=[f'pub{it}'], prio=0)
        I(f'ds_read_b64_tr_b16 {vr(o+2, 2)}, v{V_SR2} offset:{576*slot}', mr=[f'pub{it}'], prio=0)
        I(f's_mov_b32 s{S_TILE}, {it*524288}', prio=0)
        I(f'buffer_store_dwordx4 {vr(o, 4)}, v{V_OUT}, {sr(S_OUT, 4)}, s{S_TILE} offen', prio=0, mw=[f'st{it}'])
        if role == 0 and opt.get('wb2', 0) >> slot & 1:
            def wb():
                a(f's_lshr_b32 s{S_T+2}, s2, {opt.get("wbs", 3)}')
                a(f's_or_b32 s{S_T+2}, s{S_T+2}, s{S_WAVE}')
                a(f's_cbranch_scc1 L_wb{it}')
                a.raw('    buffer_wbl2 sc1')
                a.label(f'L_wb{it}')
            L.append(Item(fn=wb, mr=[f'st{it}'], cost=12))

    kd_done = set()

    def direct(w):
        for it in tiles:
            s = 8 * it - w
            if 0 <= s <= 16 and s not in kd_done:
                kdread(s)
                kd_done.add(s)
        I(f'ds_read_b128 {vr(ring[(w - wlo) % len(ring)], 4)}, v{V_UF} offset:{uoff + 64*w + 32}',
          mr=['pubA' if 32 * w + 266 <= tA else 'pubB'])
        for it in tiles:
            s = 8 * it - w
            if 0 <= s <= 16:
                accum(it, V_KD + 4 * s, ring[(w - wlo) % len(ring)])

    def transpose(pair):
        nm = 'AB'[pair]
        nb = opt.get(f'trb{role}', 1300) if pair else 0
        I(f's_mov_b32 m0, s{S_MB if pair else S_MA}')
        for q in range(4):
            for hi_ in range(2):
                t = V_US + (2 * q + hi_) % 4
                I(f'v_perm_b32 v{t}, v{V_URAW[2*pair+1]+q}, v{V_URAW[2*pair]+q}, s{S_SELHI if hi_ else S_SELLO}', notbefore=nb)
                I(f'ds_write_addtid_b32 v{t} offset:{(2*q+hi_)*US}', mw=['u' + nm])

        def fn():
            stamp(a, late=True)
            a.barrier()
        L.append(Item(fn=fn, mr=['u' + nm], mw=['bar', 'pub' + nm], cost=8, delay=opt.get('udel', 32)))

    todo = set()
    for it in tiles:
        todo.add(('OUT', it))
        for mt in mts:
            if 2 <= it - mt <= 4:
                todo |= {('D2', mt, it), ('B2', mt), ('G', mt)}
            if 4 <= it - mt <= 7:
                todo |= {('D3', mt, it), ('B3', mt), ('G', mt)}
            if it - mt == 4:
                todo.add(('FX', it))
    L += opreads
    transpose(0)
    I(f's_mov_b32 m0, s{S_BASE}')
    for mt in (0, 1):
        token(('G', mt))
    L += kmfma
    mark()
    I(f'v_add_f32 v{D}, v{D}, v{V_DSK}')
    for t in SEQ[role][opt.get(f'seq{role}', 0)]:
        token(t)
    assert not todo, todo
    schedule(a, L, verbose=True, ladder=opt.get('ladder', 0), merge=opt.get('merge', 40), ahead=opt.get('ahead', 16),
             lds_lat=opt.get('lat', 110), inorder_mfma=opt.get('inord', 0), group=opt.get('grp', 1),
             drop=[n for b_, n in enumerate(['mfma', 'valu', 'ldsr', 'ldsw']) if opt.get('drop', 0) >> b_ & 1])
    stamp(a, late=True)


HEADER = open('standalone__ssm_conv_s4__prompt.s.ref').read().split('; Override launch')[0]


def build(opt):
    body, a, b = gen(opt)
    s = HEADER
    s += f'; @launch grid=(256,1,1) block=(512,1,1) lds={LDS_BYTES}\n'
    s += '.amdgcn_target "amdgcn-amd-amdhsa--gfx950"\n.text\n'
    s += f'.globl {KNAME}\n.p2align 8\n.type {KNAME},@function\n{KNAME}:\n'
    s += body
    s += 'L_end:\n    s_endpgm\n'
    s += '; per-lane LDS offsets (16-bit pairs) and the 0/1 band matrices, read as data\n.p2align 7\nL_tbl:\n' + tables()
    s += f'''.section .rodata,"a"
.p2align 6
.amdhsa_kernel {KNAME}
  .amdhsa_next_free_vgpr 256
  .amdhsa_next_free_sgpr 102
  .amdhsa_accum_offset 256
  .amdhsa_group_segment_fixed_size 0
  .amdhsa_kernarg_size 96
  .amdhsa_user_sgpr_count 2
  .amdhsa_user_sgpr_kernarg_segment_ptr 1
  .amdhsa_system_sgpr_workgroup_id_x 1
.end_amdhsa_kernel
'''
    return s, a, b


if __name__ == '__main__':
    out = sys.argv[1]
    opt = {}
    for kv in sys.argv[2:]:
        k, v = kv.split('=')
        opt[k] = int(v)
    s, a, b = build(opt)
    open(out, 'w').write(s)
    print('role0+common', a.stats, 'nops', a.nops, '| role1', b.stats, 'nops', b.nops)
```

```python
import sys
from asmlib import Asm, vr, sr, Item, schedule

KNAME = 'standalone__ssm_conv_s4__prompt_kernel'

RS = 16320
ROW = 272
NROWS = 54
UT = 8 * RS
US = 4160
LDS_BYTES = UT + 8 * US
BAND = 4096
STG = 18 * ROW
T2 = NROWS * ROW
T2B = 376
T3 = T2 + 820
assert T3 + 316 <= RS and LDS_BYTES <= 163840 and T2 % 16 == 0

XROW = {0: 15, 1: 5, 2: 19, 3: 20, 4: 3, 5: 4, 6: 9, 7: 8, 8: 21, 256: 12, 258: 14, 260: 11, 262: 7, 264: 2, 516: 13, 520: 18,
        772: 10, 776: 6, 1032: 1, 1288: 17, 1544: 0, 1800: 16}
XV = [(v, 256 + [0, 0, 2, 4, 4, 4, 6, 8, 8][v]) for v in range(9)] + [(516, 772), (520, 776), (1032, 1544), (1288, 1800)]
XOF = [XV[min(4 * (r >> 3) + (r & 3), 12)][(r >> 2) & 1] for r in range(32)]
ALPHA = {7: 0, 8: 1, 1: 2, 2: 3, 3: 4, 4: 5, 5: 6, 6: 7}


def mu(g, e):
    return 16 * (g >> 1) + 4 * (g & 1) + 2 * (e >> 2) + 8 * (1 - ((e >> 1) & 1)) + (e & 1)


def t1_dword(copy, r, n):
    return 68 * (1 + ALPHA[r]) + n if copy == 0 else 68 * (9 + ALPHA[r]) + 1 + n


S_U, S_OUT = 24, 28
S_WAVE, S_ROLE, S_CG, S_BASE, S_MA, S_UB = 32, 33, 34, 35, 36, 37
S_T = 38
S_SELLO, S_SELHI, S_MB, S_HIMASK = 48, 49, 50, 51
S_L0, S_L032 = 52, 54
S_TILE = 56
S_KN = 57
S_QD = 58
S_UFULL = 96
S_STAMP = 60

(V_LANE, V_UF, V_K1A, V_K1B, V_K2, V_K3, V_SW, V_SR, V_OUT, V_ZERO, V_SR2,
 V_UL2, V_UL3, V_USW, V_BR,
 V_LP, V_YR, V_XR, V_DSK,
 V_EW, V_ESEL, V_T3W, V_FREE) = range(1, 24)
V_US = 24
V_BAND = 28
V_ACC = 56
V_KD = 76
V_K2F = 144
V_K3F = 168
V_PK = 184
V_D = 208
V_G = 224
V_TT = 248
V_URAW = 56
V_PAR = 72
V_CC = 80
V_W = 86
V_FR = 144
V_TMP = 224


def edge_list():
    Z, A_, B_, K0 = 0x0c0c, 0x0504, 0x0302, 0x0100
    tapsel = lambda t: K0 if t == 0 else A_ if 512 <= t <= 514 else B_ if 515 <= t <= 517 else Z
    need = {}
    for s_ in range(17):
        for l in range(64):
            f, g = l & 15, l >> 4
            for beta in range(2):
                tau = f + 5 + 32 * s_ - 16 * (g >> 1) - 4 * (g & 1) - 2 * beta
                n = (tau - 1) >> 3
                r = tau - 8 * n
                cp = (n - 1) & 1
                for nn in (n - 1, n):
                    if not 0 <= nn < 64:
                        t = 8 * nn + r
                        sel = tapsel(t) | (tapsel(t - 1) << 16)
                        dw = t1_dword(cp, r, nn)
                        assert need.setdefault(dw, sel) == sel
    data = {t1_dword(cp, r, n) for cp in range(2) for r in ALPHA for n in range(64)}
    assert not data & set(need)
    e = sorted((dw, sel) for dw, sel in need.items() if not 64 <= dw < 68)
    assert len(e) <= 64
    return e + [e[-1]] * (64 - len(e))


EDGE = edge_list()


def lane_consts(l):
    c, h, f, g = l & 31, l >> 5, l & 15, l >> 4

    def k1(beta):
        tau = f + 5 - 16 * (g >> 1) - 4 * (g & 1) - 2 * beta
        n = (tau - 1) >> 3
        return 4 * t1_dword((n - 1) & 1, tau - 8 * n, n - 1)
    a2 = 8 * (f - 4 * g + 12)
    d = (l & 15) >> 1
    pos = 2 * (d & 3) + (1 - (d >> 2))
    return {
        V_YR: ROW * c + 16 * h,
        V_XR: ROW * (32 + XROW[XOF[c]]) + 16 * h,
        V_K1A: k1(0),
        V_K1B: k1(1),
        V_K2: T2 + (a2 if a2 % 16 == 0 else a2 + T2B),
        V_K3: T3 + 4 * (f - 4 * g + 12),
        V_EW: 4 * EDGE[l][0],
        V_T3W: T3 + 60 + 128 * h + 2 * c,
        V_SW: STG + 144 * g + 8 * f,
        V_UF: 32 * f + 16 * g,
        V_USW: (4128 if l < 16 else 0) + 4 * pos + 2 * (l & 1),
        V_SR: (f >> 2) * RS + STG + 144 * (f & 3) + 8 * (g & 1),
    }


LC_ORDER = [V_YR, V_XR, V_USW, V_UF, V_K1A, V_K1B, V_K2, V_K3, V_EW, V_T3W, V_SW, V_SR]
LC_BASE = {V_UF: S_UB, V_USW: S_UB, V_SR: S_QD}


def tables():
    words = []
    for half in range(2):
        for l in range(64):
            lc = lane_consts(l)
            v = [lc[r] for r in LC_ORDER] + [0, 0, EDGE[l][1] & 0xffff, EDGE[l][1] >> 16]
            assert all(0 <= x < 65536 for x in v) and len(v) == 16
            for q in range(4):
                k = 8 * half + 2 * q
                words.append(v[k] | (v[k + 1] << 16))
    for (lo, hi, one) in [(6, 10, 0x3f80), (11, 13, 0x3f80), (14, 18, 0x3f80), (19, 21, 0x3f80), (5, 11, 0x3f80), (12, 20, 0x3f80),
                          (5, 5, 1)]:
        for l in range(64):
            f, g = l & 15, l >> 4
            e = [one if lo <= f + 21 - mu(g, k) <= hi else 0 for k in range(8)]
            words += [e[2 * q] | (e[2 * q + 1] << 16) for q in range(4)]
    s = ''
    for k in range(0, len(words), 8):
        s += '.long ' + ', '.join(f'0x{w:08x}' for w in words[k:k + 8]) + '\n'
    return s


def gen(opt):
    a = Asm()
    stamp_n = [0]

    def stamp(a, late=False, always=False):
        if opt.get('stamps') and (always or (opt.get('stamps') == 2) == late or opt.get('stamps') == 3):
            a.raw(f'    {"s_memrealtime" if opt.get("rt") else "s_memtime"} {sr(S_STAMP + 2*stamp_n[0], 2)}')
            stamp_n[0] += 1

    def ampstamp(k):
        if opt.get('amp') and opt.get('ampat', 0) == k:
            a.raw(f'    s_memrealtime s[100:101]')

    if opt.get('stamps') or opt.get('spin') or opt.get('amp'):
        a.raw(f'    s_memrealtime {sr(90, 2)}')
    stamp(a, always=True)
    a(f's_load_dwordx16 s[4:19], s[0:1], 0')
    a(f's_load_dwordx4 s[20:23], s[0:1], 64')
    if opt.get('stamps'):
        a(f's_load_dwordx2 s[94:95], s[0:1], 88')
    a('s_cmp_ge_u32 s2, 256')
    a('s_cbranch_scc1 L_end')
    TB = V_TMP
    X0, X1, X2, X3 = V_TMP + 8, V_TMP + 9, V_TMP + 10, V_TMP + 11
    a(f's_getpc_b64 {sr(S_T, 2)}')
    a.label('L_pc')
    a(f'''
    v_readfirstlane_b32 s{S_WAVE}, v0
    v_and_b32 v{V_LANE}, 63, v0
    s_add_u32 s{S_T+2}, s{S_T}, L_tbl-L_pc
    s_addc_u32 s{S_T+3}, s{S_T+1}, 0
    v_lshlrev_b32 v{V_BR}, 4, v{V_LANE}
    s_lshl_b32 s{S_T+4}, s{S_WAVE}, 4
    s_lshr_b32 s{S_WAVE}, s{S_WAVE}, 6
    global_load_dwordx4 {vr(TB, 4)}, v{V_BR}, {sr(S_T+2, 2)}
    global_load_dwordx4 {vr(TB+4, 4)}, v{V_BR}, {sr(S_T+2, 2)} offset:1024
    s_add_u32 m0, s{S_T+4}, {BAND - 2048}
    s_min_u32 s{S_T+4}, s{S_T+4}, {6*1024}
    v_add_u32 v{X0}, s{S_T+4}, v{V_BR}
    global_load_lds_dwordx4 v{X0}, {sr(S_T+2, 2)} offset:2048
    ''')
    T_H1 = sum(p << (4 * p) for p in range(16))
    if opt.get('worder'):
        wo = [int(c) for c in '%04d' % opt['worder']]
        T_H1 = sum((4 * wo[p >> 2] + (p & 3)) << (4 * p) for p in range(16))
    h0 = [0, 4, 8, 12, 1, 2, 3, 5, 6, 7, 9, 10, 11, 13, 14, 15]
    T_H0 = sum(v << (4 * p) for p, v in enumerate(h0))
    UL0, UL1 = V_TMP + 12, V_TMP + 13
    a(f"""
    s_and_b32 s{S_T+2}, s2, 7
    s_bfe_u32 s{S_ROLE}, s2, 0x10005
    s_bfe_u32 s{S_T+4}, s2, 0x20003
    s_lshr_b32 s{S_T+5}, s2, 6
    s_lshl2_add_u32 s{S_T+4}, s{S_T+5}, s{S_T+4}
    s_lshl4_add_u32 s{S_T+2}, s{S_T+2}, s{S_T+4}
    s_lshl_b32 s{S_CG}, s{S_T+2}, 4
    s_lshl3_add_u32 s{S_T+2}, s{S_T+2}, s{S_WAVE}
    s_lshl_b32 s{S_T+5}, s{S_T+2}, 8
    s_lshl_b32 s{S_T+2}, s{S_T+2}, 1
    v_lshl_add_u32 v{X1}, v{V_LANE}, 2, s{S_T+5}
    v_mov_b32 v{X2}, s{S_T+2}
    v_lshl_add_u32 v{X3}, v{V_LANE}, 11, v{X2}
    v_add_u32 v{X3}, {2043*2048}, v{X3}
    v_and_b32 v{V_LP}, 1, v{V_LANE}
    v_xor_b32 v{V_LP}, 1, v{V_LP}
    v_bfe_u32 v{X0}, v{V_LANE}, 1, 2
    v_lshl_add_u32 v{V_LP}, v{V_LP}, 2, v{X0}
    v_and_or_b32 v{V_LP}, v{V_LANE}, 56, v{V_LP}
    s_mov_b32 s{S_U+3}, 0x00020000
    s_mov_b32 s{S_UFULL+3}, 0x00020000
    s_mov_b32 s{S_UFULL+2}, 4194304
    s_mov_b32 s{S_T+6}, {T_H1 & 0xffffffff}
    s_mov_b32 s{S_T+7}, {T_H1 >> 32}
    s_cmp_eq_u32 s{S_ROLE}, 0
    s_cselect_b32 s{S_U+2}, {1280*2048}, s{S_UFULL+2}
    s_cselect_b32 s{S_T+6}, {T_H0 & 0xffffffff}, s{S_T+6}
    s_cselect_b32 s{S_T+7}, {T_H0 >> 32}, s{S_T+7}
    s_lshl_b32 s{S_T+2}, s{S_WAVE}, 2
    s_lshr_b32 s{S_T+6}, s{S_T+6}, s{S_T+2}
    s_lshr_b32 s{S_T+7}, s{S_T+7}, s{S_T+2}
    s_bfe_u32 s{S_T+3}, s{S_T+4}, 0x20001
    s_xor_b32 s{S_T+4}, s{S_T+4}, s{S_ROLE}
    s_and_b32 s{S_T+4}, s{S_T+4}, 1
    s_add_u32 s{S_T+8}, s{S_T+6}, s{S_T+3}
    s_and_b32 s{S_T+8}, s{S_T+8}, 3
    s_and_b32 s{S_T+2}, s{S_T+6}, 12
    s_or_b32 s{S_T+8}, s{S_T+8}, s{S_T+2}
    s_lshl_b32 s{S_T+5}, s{S_T+4}, 11
    s_add_u32 s{S_T+5}, s{S_T+5}, s{S_CG}
    s_lshl_b32 s{S_T+2}, s{S_T+8}, 18
    s_add_u32 s{S_T+2}, s{S_T+2}, s{S_T+5}
    s_xor_b32 s{S_T+9}, s{S_T+2}, 2048
    s_sub_u32 s{S_T+2}, s{S_T+2}, {5*2048}
    s_sub_u32 s{S_T+9}, s{S_T+9}, {5*2048}
    v_lshl_add_u32 v{UL0}, v{V_LP}, 12, s{S_T+2}
    v_lshl_add_u32 v{UL1}, v{V_LP}, 12, s{S_T+9}
    """)
    a(f'global_load_ushort v{V_PAR+6}, v{X2}, s[18:19]')
    for k in range(6):
        a(f'global_load_dword v{V_PAR+k}, v{X1}, s[{6+2*k}:{7+2*k}]')
        if k == 1 and opt.get('split', 1):
            a('s_barrier')
    a(f'global_load_ushort v{V_PAR+7}, v{X2}, s[20:21]')
    a(f"""
    s_mov_b32 s{S_U}, s4
    s_mov_b32 s{S_U+1}, s5
    buffer_load_ushort v{V_US}, v{X3}, {sr(S_U, 4)}, 0 offen
    s_mov_b32 s{S_UFULL}, s4
    s_mov_b32 s{S_UFULL+1}, s5
    """)
    stamp(a)
    a('s_barrier')

    def uload(k):
        if opt.get('nou', 0) > 3 - k:
            return
        a(f'buffer_load_dwordx4 {vr(V_URAW+4*k, 4)}, v{[UL0, UL1, V_UL2, V_UL3][k]}, {sr(S_UFULL if k == 0 else S_U, 4)}, 0 offen')
    if not opt.get('udelay', 0):
        uload(0)
        uload(1)
    a(f"""
    s_add_u32 s{S_T+9}, s{S_T+7}, s{S_T+3}
    s_and_b32 s{S_T+9}, s{S_T+9}, 3
    s_and_b32 s{S_T+2}, s{S_T+7}, 12
    s_or_b32 s{S_T+9}, s{S_T+9}, s{S_T+2}
    s_lshl_b32 s{S_T+2}, s{S_T+9}, 18
    s_add_u32 s{S_T+2}, s{S_T+2}, s{S_T+5}
    s_xor_b32 s{S_T+3}, s{S_T+2}, 2048
    s_sub_u32 s{S_T+2}, s{S_T+2}, {5*2048}
    s_sub_u32 s{S_T+3}, s{S_T+3}, {5*2048}
    v_lshl_add_u32 v{V_UL2}, v{V_LP}, 12, s{S_T+2}
    v_lshl_add_u32 v{V_UL3}, v{V_LP}, 12, s{S_T+3}
    s_add_u32 s{S_MA}, s{S_T+8}, 4
    s_and_b32 s{S_T+6}, s{S_T+6}, 3
    s_cmp_ge_u32 s{S_T+8}, 12
    s_cselect_b32 s{S_MA}, s{S_T+6}, s{S_MA}
    s_add_u32 s{S_MB}, s{S_T+9}, 4
    s_and_b32 s{S_T+7}, s{S_T+7}, 3
    s_cmp_ge_u32 s{S_T+9}, 12
    s_cselect_b32 s{S_MB}, s{S_T+7}, s{S_MB}
    s_cmp_eq_u32 s{S_ROLE}, 0
    s_cselect_b32 s{S_MA}, s{S_MA}, s{S_T+8}
    s_cselect_b32 s{S_MB}, s{S_MB}, s{S_T+9}
    s_lshl_b32 s{S_MA}, s{S_MA}, 8
    s_lshl_b32 s{S_MB}, s{S_MB}, 8
    s_add_u32 s{S_MA}, s{S_MA}, {UT+32}
    s_add_u32 s{S_MB}, s{S_MB}, {UT+32}
    s_mov_b32 s{S_SELLO}, 0x05040100
    s_cmp_eq_u32 s{S_T+4}, 1
    s_cselect_b32 s{S_SELLO}, 0x01000504, s{S_SELLO}
    s_add_u32 s{S_SELHI}, s{S_SELLO}, 0x02020202
    s_mov_b32 s{S_OUT}, s22
    s_mov_b32 s{S_OUT+1}, s23
    s_mov_b32 s{S_OUT+2}, 4194304
    s_mov_b32 s{S_OUT+3}, 0x00020000
    s_mul_i32 s{S_BASE}, s{S_WAVE}, {RS}
    s_mov_b32 m0, s{S_BASE}
    v_mov_b32 v{V_ZERO}, 0
    v_mov_b32 v{X0}, 0x3f80
    ds_write_addtid_b32 v{V_ZERO} offset:16
    ds_write_addtid_b32 v{X0} offset:0
    ds_write_addtid_b32 v{V_ZERO} offset:{T2}
    ds_write_addtid_b32 v{V_ZERO} offset:{T2+256}
    ds_write_addtid_b32 v{V_ZERO} offset:{T2+640}
    s_mov_b32 s{S_HIMASK}, 0xffff0000
    s_mov_b64 {sr(S_L0, 2)}, 1
    s_mul_i32 s{S_UB}, s{S_WAVE}, {US}
    s_add_u32 s{S_UB}, s{S_UB}, {UT}
    s_lshl_b32 s{S_QD}, s{S_WAVE}, 4
    s_lshl_b32 s{S_T+5}, s{S_WAVE}, 16
    s_add_u32 s{S_T+5}, s{S_T+5}, s{S_CG}
    v_cmp_gt_u32 vcc, 32, v{V_LANE}
    v_lshl_add_u32 v{V_OUT}, v{V_LANE}, 11, s{S_T+5}
    v_cndmask_b32 v{V_OUT}, -1, v{V_OUT}, vcc
    """)
    for k, r in enumerate(LC_ORDER):
        a(f'v_add_u32_sdwa v{r}, s{LC_BASE.get(r, S_BASE)}, v{TB + k//2} dst_sel:DWORD dst_unused:UNUSED_PAD '
          f'src0_sel:DWORD src1_sel:WORD_{k & 1}')
    a(f'v_mov_b32 v{V_ESEL}, v{TB+7}')
    a(f'v_add_u32 v{V_SR2}, {4*RS}, v{V_SR}')
    a.wait(vm=len(a.vm) - 1)
    a('s_barrier')
    for k in range(7):
        a(f'ds_read_b128 {vr(V_BAND+4*k, 4)}, v{V_BR} offset:{BAND + 1024*k}')
    stamp(a)

    DT = V_CC + 4
    a(f'v_lshlrev_b32 v{DT}, 16, v{V_PAR+6}')
    ampstamp(1)
    if opt.get('udelay', 0) == 1:
        uload(0)
        uload(1)
    a(f'''
    v_mul_f32 v{DT}, 0x3fb8aa3b, v{DT}
    v_exp_f32 v{DT}, v{DT}
    v_cvt_pk_bf16_f32 v{DT}, v{DT}, v{DT}
    v_lshlrev_b32 v{DT}, 16, v{DT}
    v_mul_f32 v{V_CC}, 0x3fb8aa3b, v{DT}
    v_mul_f32 v{V_CC+1}, 0.15915494, v{DT}
    v_mul_f32 v{V_CC+2}, 0x43800000, v{V_CC}
    v_mul_f32 v{V_CC+3}, 0x43800000, v{V_CC+1}
    ''')
    stamp(a)

    names = ['z', 'z2', 'B', 'C', 'E1', 'E2', 'E4', 'EH', 'P0', 'P1', 'P2', 'P3', 'P4', 'P5', 'P6', 'P8',
             'Q0', 'Q1', 'Q2', 'Q3', 'M', 'E8', 't0', 't1', 't2', 't3']
    R = {n: V_W + 2 * k for k, n in enumerate(names)}
    assert V_W + 2 * len(names) <= V_FR
    cv = [V_TT + k for k in range(4)]
    cnt = [0]

    def p(n):
        return vr(R[n], 2)

    def cmul(d, x, y):
        t = 't%d' % (cnt[0] % 4)
        cnt[0] += 1
        return [f'v_pk_mul_f32 {p(t)}, {p(x)}, {p(y)} op_sel_hi:[1,0]',
                f'v_pk_fma_f32 {p(d)}, {p(x)}, {p(y)}, {p(t)} op_sel:[1,1,0] op_sel_hi:[0,1,1] neg_lo:[1,0,0]']

    def cmul_np(d, x, y):
        t = R['t%d' % (cnt[0] % 4)]
        cnt[0] += 1
        x, y, d = R[x], R[y], R[d]
        return [f'v_mul_f32 v{t}, v{x}, v{y}', f'v_mul_f32 v{t+1}, v{x+1}, v{y}',
                f'v_fma_f32 v{d}, -v{x+1}, v{y+1}, v{t}', f'v_fma_f32 v{d+1}, v{x}, v{y+1}, v{t+1}']

    def put(n, row, neg):
        c = cv[cnt[0] % len(cv)]
        return [f'v_cvt_pk_bf16_f32 v{c}, v{R[n]}, {"-" if neg else ""}v{R[n]+1}',
                f'ds_write_addtid_b32 v{c} offset:{row*ROW}']

    def ux(d, x, y, val):
        return cmul(d, x, y) + put(d, 32 + XROW[val], True)

    def uy(d, x, y, val):
        return cmul(d, x, y) + put(d, val // 8, False)

    def setup(ps, packed):
        o = []

        def unpack(k, n, h):
            if ps == 0:
                o.append(f'v_lshlrev_b32 v{R[n]+h}, 16, v{V_PAR+k}')
            else:
                o.append(f'v_and_b32 v{R[n]+h}, s{S_HIMASK}, v{V_PAR+k}')
        z, z2, B, E1, EH = R['z'], R['z2'], R['B'], R['E1'], R['EH']
        unpack(0, 'z', 0); unpack(1, 'z', 1)
        if packed:
            o += [f"v_pk_mul_f32 {p('z2')}, {p('z')}, {vr(V_CC+2, 2)}",
                  f"v_pk_mul_f32 {p('z')}, {p('z')}, {vr(V_CC, 2)}"]
        else:
            o += [f'v_mul_f32 v{z2}, v{z}, v{V_CC+2}', f'v_mul_f32 v{z2+1}, v{z+1}, v{V_CC+3}',
                  f'v_mul_f32 v{z}, v{z}, v{V_CC}', f'v_mul_f32 v{z+1}, v{z+1}, v{V_CC+1}']
        o += [f'v_fract_f32 v{z+1}, v{z+1}', f'v_fract_f32 v{z2+1}, v{z2+1}',
              f'v_exp_f32 v{z}, v{z}', f'v_cos_f32 v{E1}, v{z+1}', f'v_sin_f32 v{E1+1}, v{z+1}',
              f'v_exp_f32 v{z2}, v{z2}', f'v_cos_f32 v{EH}, v{z2+1}', f'v_sin_f32 v{EH+1}, v{z2+1}']
        if packed:
            o += [f"v_pk_mul_f32 {p('E1')}, {p('E1')}, {p('z')} op_sel_hi:[1,0]",
                  f"v_pk_mul_f32 {p('EH')}, {p('EH')}, {p('z2')} op_sel_hi:[1,0]"]
            o += cmul('E2', 'E1', 'E1') + cmul('E4', 'E2', 'E2')
        else:
            o += [f'v_mul_f32 v{E1}, v{E1}, v{z}', f'v_mul_f32 v{E1+1}, v{E1+1}, v{z}',
                  f'v_mul_f32 v{EH}, v{EH}, v{z2}', f'v_mul_f32 v{EH+1}, v{EH+1}, v{z2}']
            o += cmul_np('E2', 'E1', 'E1') + cmul_np('E4', 'E2', 'E2')
        na = len(o)
        unpack(2, 'B', 0); unpack(3, 'B', 1); unpack(4, 'C', 0); unpack(5, 'C', 1)
        if packed:
            o += [f"v_pk_mul_f32 {p('B')}, {p('B')}, {vr(DT, 2)} op_sel_hi:[1,0]"]
        else:
            o += [f'v_mul_f32 v{B}, v{B}, v{DT}', f'v_mul_f32 v{B+1}, v{B+1}, v{DT}']
        return o[:na], o[na:]

    def units():
        U = [uy('E8', 'E4', 'E4', 8), uy('Q1', 'E8', 'E8', 16), uy('Q2', 'Q1', 'E8', 24), uy('M', 'Q1', 'Q1', 32)]
        for st in range(1, 8):
            U += [uy('Q0', 'E8' if st == 1 else 'Q0', 'M', 8 + 32 * st), uy('Q1', 'Q1', 'M', 16 + 32 * st),
                  uy('Q2', 'Q2', 'M', 24 + 32 * st)]
            if st < 7:
                U.append(uy('Q3', 'M' if st == 1 else 'Q3', 'M', 32 + 32 * st))
        assert len(U) == 31
        U += [ux('P0', 'C', 'B', 0), ux('P1', 'P0', 'E1', 1), ux('P2', 'P0', 'E2', 2), ux('P3', 'P1', 'E2', 3),
              ux('P4', 'P0', 'E4', 4), ux('P5', 'P1', 'E4', 5), ux('P6', 'P2', 'E4', 6), ux('P5', 'P3', 'E4', 7),
              ux('P8', 'P0', 'E8', 8), ux('P0', 'P0', 'EH', 256), ux('P2', 'P2', 'EH', 258), ux('P4', 'P4', 'EH', 260),
              ux('P6', 'P6', 'EH', 262), ux('P8', 'P8', 'EH', 264), ux('P4', 'P4', 'EH', 516),
              ux('P8', 'P8', 'EH', 520), ux('P4', 'P4', 'EH', 772), ux('P8', 'P8', 'EH', 776), ux('P8', 'P8', 'EH', 1032)]
        tail = [ux('P8', 'P8', 'EH', 1288), ux('P8', 'P8', 'EH', 1544), ux('P8', 'P8', 'EH', 1800)]
        return U, tail

    def yread(s):
        return f'ds_read_b128 {vr(V_FR+8*s+4, 4)}, v{V_YR} offset:{32*s}'

    def opreads():
        o = []
        for s in range(8):
            o.append(Item(f'ds_read_b128 {vr(V_FR+8*s, 4)}, v{V_XR} offset:{32*s}', mw=['KG']))
            if not opt.get('yearly', 0):
                o.append(Item(yread(s), mw=['KG']))
        return o

    def kmfma(ps):
        return [Item(f'v_mfma_f32_32x32x16_bf16 {vr(V_D, 16)}, {vr(V_FR+8*s, 4)}, {vr(V_FR+8*s+4, 4)}, '
                     f'{"0" if (ps == 0 and s == 0) else vr(V_D, 16)}') for s in range(8)]

    def main(ps, extra):
        U, tail = units()
        a.raw('.p2align 3')
        pend = []
        nb = opt.get('wb', 1)
        lad = opt.get('klad', 0)
        for k, u_ in enumerate(U):
            if extra.get(k) or len(pend) >= nb:
                for ln in pend:
                    a(ln)
                pend = []
            for f in extra.get(k, ()):
                f()
            if lad and k % lad == 0:
                a(f's_setprio {3 - (k // lad) % 4}')
                a('s_nop 0')
            for ln in u_[:-1]:
                a(ln)
            pend.append(u_[-1])
        for ln in pend:
            a(ln)
        if opt.get('skip3', 1):
            a(f's_cmp_eq_u32 s{S_ROLE}, 0')
            a(f's_cbranch_scc1 L_skip{ps}')
        keep = list(a.lgkm)
        for u_ in tail:
            for ln in u_:
                a(ln)
        if opt.get('skip3', 1):
            a.label(f'L_skip{ps}')
            a.lgkm = keep + [[]]
            a.lgkm.pop(len(keep) - 1)

    def extras(ps):
        ex = {}
        if opt.get('yearly', 0):
            for s in range(8):
                ex.setdefault(33 + 2 * s, []).append(lambda s=s: a(yread(s)))
        for k, key in ((2, 'u2'), (3, 'u3')):
            pos_ = opt.get(key, {2: 49, 3: 130}[k])
            if pos_ // 100 == ps:
                ex.setdefault(pos_ % 100, []).append(lambda k=k: uload(k))
        return ex

    sa, sb = setup(0, True)
    for ln in sa:
        a(ln)
    ampstamp(2)
    if opt.get('udelay', 0) == 2:
        uload(0)
        uload(1)
    a.wait(lgkm=0)
    a('s_barrier')
    stamp(a)
    ex = extras(0)

    def bc0():
        stamp(a)
        for ln in sb:
            a(ln)
        a(f'v_lshlrev_b32 v{V_DSK}, 16, v{V_PAR+7}')
        a(f'v_cndmask_b32 v{V_DSK}, 0, v{V_DSK}, {sr(S_L0, 2)}')
        a(f'ds_write_b16 v{V_USW}, v{V_US}')
        a.raw('.p2align 3')
        stamp(a)
    ex.setdefault(31, []).insert(0, bc0)
    main(0, ex)
    stamp(a)
    sa, sb = setup(1, False)
    if opt.get('barm', 0):
        a('s_barrier')
    schedule(a, opreads() + [Item(x) for x in sa + sb] + kmfma(0), verbose=True, group=opt.get('grp', 1))
    if opt.get('bar1', 1):
        a('s_barrier')
    stamp(a)
    main(1, extras(1))
    ampstamp(3)
    stamp(a, always=True)
    if opt.get('uprobe'):
        a.wait(vm=2)
        stamp(a, always=True)
        a.wait(vm=0)
        ampstamp(4)
        stamp(a, always=True)
    if opt.get('barm', 0):
        a('s_barrier')

    a(f's_cmp_eq_u32 s{S_ROLE}, 0')
    a('s_cbranch_scc0 L_role1')
    b = a.fork()
    n0 = stamp_n[0]
    conv(a, 0, opt, stamp, opreads(), kmfma(1))
    finish(a, opt, stamp_n[0])
    stamp_n[0] = n0
    b.label('L_role1')
    conv(b, 1, opt, stamp, opreads(), kmfma(1))
    finish(b, opt, stamp_n[0])
    body = a.text() + b.text()
    return body, a, b


def finish(a, opt, nst):
    if opt.get('spin') or opt.get('amp'):
        lab = f'L_spin{id(a)}'
        a.wait(vm=0, lgkm=0)
        if opt.get('amp'):
            if opt.get('ampat'):
                a.raw('    s_sub_u32 s96, s100, s90')
                a.raw(f'    s_mul_i32 s96, s96, {opt["amp"]}')
                a.raw(f'    s_add_u32 s96, s96, 3000')
            else:
                a.raw(f'    s_memrealtime s[92:93]')
                a.raw('    s_waitcnt lgkmcnt(0)')
                a.raw('    s_sub_u32 s96, s92, s90')
                a.raw(f'    s_mul_i32 s96, s96, {opt["amp"]}')
        else:
            a.raw(f'    s_mov_b32 s96, {opt["spin"]}')
        a.label(lab)
        a.raw(f'    s_memrealtime s[92:93]')
        a.raw('    s_waitcnt lgkmcnt(0)')
        a.raw('    s_sub_u32 s92, s92, s90')
        a.raw('    s_cmp_lt_u32 s92, s96')
        a.raw(f'    s_cbranch_scc1 {lab}')
    if opt.get('stamps'):
        a.wait(vm=0, lgkm=0)
        a.raw(f'    {"s_memrealtime" if opt.get("rt") else "s_memtime"} {sr(S_STAMP + 2*nst, 2)}')
        a.raw(f'    s_memrealtime {sr(92, 2)}')
        a.raw('    s_waitcnt lgkmcnt(0)')
        a(f'v_mov_b32 v2, 0')
        for k in range(nst + 1):
            a(f's_sub_u32 s{S_T}, s{S_STAMP+2*k}, s{S_STAMP}')
            a(f'v_writelane_b32 v2, s{S_T}, {k}')
        a(f'v_writelane_b32 v2, s90, 14')
        a(f'v_writelane_b32 v2, s92, 15')
        a(f'v_writelane_b32 v2, s{S_ROLE}, 16')
        a(f's_lshl_b32 s{S_T}, s2, 3')
        a(f's_add_u32 s{S_T}, s{S_T}, s{S_WAVE}')
        a(f's_lshl_b32 s{S_T}, s{S_T}, 8')
        a(f'v_lshl_add_u32 v3, v{V_LANE}, 2, s{S_T}')
        a(f'global_store_dword v3, v2, s[94:95]')
    a('s_endpgm')


def conv(a, role, opt, stamp, opreads, kmfma):
    tiles = [0, 1, 2, 3, 4] if role == 0 else [5, 6, 7]
    uoff = 1024 if role == 0 else 0
    acc = {it: V_ACC + 4 * k for k, it in enumerate(tiles)}
    started = set()
    L = []

    def I(text, **kw):
        for ln in text.strip().split('\n'):
            if ln.strip():
                L.append(Item(ln.strip(), **kw))

    def mf(d, x, y, first):
        I(f'v_mfma_f32_16x16x32_bf16 {vr(d, 4)}, {vr(x, 4)}, {vr(y, 4)}, {"0" if first else vr(d, 4)}')

    def accum(it, x, y):
        mf(acc[it], x, y, it not in started)
        started.add(it)

    def mark():
        if opt.get('stamps'):
            last = [x for x in L if x.kind == 'mfma'][-1]
            tag = f'stamp{len(L)}'
            last.mw.add(tag)
            L.append(Item(fn=lambda: stamp(a, always=True), mw=[tag, 'stamps']))

    mt2 = sorted({it - d for it in tiles for d in (2, 3, 4) if it - d >= 0})
    mt3 = sorted({it - d for it in tiles for d in (4, 5, 6, 7) if it - d >= 0})
    mts = sorted(set(mt2) | set(mt3))
    d3 = sorted({it - mt for it in tiles for mt in mt3 if 4 <= it - mt <= 7})
    if role == 1:
        raw = [V_G + 8, V_G + 16, V_ACC + 12]
        G = {mt: V_G + 4 * (mt % 2) for mt in mts}
        pk2 = {mt: V_PK + 12 * (mt % 2) for mt in mt2}
        pk3 = {mt: V_PK + 12 * (mt % 2) + 8 for mt in mt3}
    else:
        raw = [V_G + 8, V_G + 16, V_K3F + 8]
        G = {mt: V_G + 4 * (mt % 2) for mt in mts}
        pk2 = {0: V_PK, 1: V_PK + 8, 2: V_PK + 16}
        pk3 = {0: V_K3F + 4}
    ring = [12, 16, V_D + 4, V_D + 12, V_D + 8, V_D, 20][:opt.get('ring', 7)]
    OUTR = V_TT

    def gread(mt):
        I(f'ds_read_b128 {vr(G[mt], 4)}, v{V_UF} offset:{uoff + 512*mt}')
    D = V_D
    TA, TB, TC, TD = V_TT + 4, V_TT + 5, V_TT + 6, V_TT + 7
    KF = V_BAND + 24

    def t23():
        I(f"""
        v_mov_b32 v{TA}, v{D+10}
        v_cvt_pk_bf16_f32 v{TB}, v{D+11}, v{D+12}
        v_cvt_pk_bf16_f32 v{TC}, -v{D+10}, v{V_ZERO}
        v_mov_b32_dpp v{TA}, v{D+9} wave_shl:1 row_mask:0xf bank_mask:0xf
        v_cvt_pk_bf16_f32 v{TA}, v{D+10}, v{TA}
        """)
        I(f'ds_write_addtid_b32 v{TA} offset:{T2+120}', mw=['T23'])
        I(f'ds_write_addtid_b32 v{TA} offset:{T2+T2B+120}', mw=['T23'])
        I(f'ds_write_b16 v{V_T3W}, v{TB}', mw=['T23'])
        if role == 1:
            I(f'ds_write_b16_d16_hi v{V_T3W}, v{TB} offset:64', mw=['T23'])
        I(f'v_readlane_b32 s{S_KN}, v{TC}, 63')

    def kfix():
        for q in range(4):
            I(f'v_mul_u32_u24 v{KF+q}, s{S_KN}, v{KF+q}')

    k2_done, k3_done = set(), set()

    def k2read(dl):
        if dl in k2_done:
            return
        k2_done.add(dl)
        k = dl - 2
        for q in range(2):
            I(f'ds_read_b128 {vr(V_K2F+8*k+4*q, 4)}, v{V_K2} offset:{128*k + 16*q}', mr=['T23'])

    def k3read(dl):
        if dl in k3_done:
            return
        k3_done.add(dl)
        k = dl - 4
        I(f'ds_read2_b32 {vr(V_K3F+4*k, 2)}, v{V_K3} offset0:{16*k} offset1:{16*k+1}', mr=['T23'])
        I(f'ds_read2_b32 {vr(V_K3F+4*k+2, 2)}, v{V_K3} offset0:{16*k+2} offset1:{16*k+3}', mr=['T23'])

    def t1():
        for k, r in enumerate([8, 2, 3, 4, 5, 6, 7, 1]):
            t = V_TT + (k % 4)
            I(f'v_cvt_pk_bf16_f32 v{t}, v{D+r}, v{D+r-1}')
            I(f'ds_write_addtid_b32 v{t} offset:{4*t1_dword(0, r, 0)}', mr=['KG'], mw=['T1'])
            I(f'ds_write_addtid_b32 v{t} offset:{4*t1_dword(1, r, 0)}', mr=['KG'], mw=['T1'])
            if r == 8:
                I(f"""
                v_readlane_b32 s{S_T}, v{t}, 63
                v_cvt_pk_bf16_f32 v{TD}, v{D}, v{D+9}
                v_readlane_b32 s{S_T+1}, v{TD}, 0
                v_mov_b32 v{TD}, s{S_T}
                v_perm_b32 v{TD}, v{TD}, s{S_T+1}, v{V_ESEL}
                """)
        I(f'ds_write_b32 v{V_EW}, v{TD}', mr=['KG'], mw=['T1'])

    def kdread(s):
        I(f'ds_read_b64 {vr(V_KD+4*s, 2)}, v{V_K1A} offset:{16*s}', mr=['T1'])
        I(f'ds_read_b64 {vr(V_KD+4*s+2, 2)}, v{V_K1B} offset:{16*s}', mr=['T1'])

    ucount = [0]

    def box_units(mt):
        us = []
        if mt in mt2:
            us += [(0, pk2[mt], 2), (2, pk2[mt] + 1, 2)]
        if mt in mt3:
            us += [(4, pk3[mt], 1)]

        def unit(b0, dst, stride):
            r = raw[ucount[0] % 3]
            ucount[0] += 1
            mf(r, G[mt], V_BAND + 4 * b0, True)
            mf(r + 4, G[mt], V_BAND + 4 * b0 + 4, True)
            for jj in range(4):
                I(f'v_cvt_pk_bf16_f32 v{dst+stride*jj}, v{r+3-jj}, v{r+7-jj}')
        return [(2, lambda u=u: unit(*u)) for u in us]

    def dil_units(mt):
        o = []
        for it in tiles:
            dl = it - mt
            if dl == 4:
                o.append((1, lambda it=it: accum(it, KF, G[mt])))
        nxt = mt + 2
        if nxt in mts:
            o.append((0, lambda: gread(nxt)))
        for it in tiles:
            dl = it - mt
            if mt in mt2 and 2 <= dl <= 4:
                o.append((2, lambda it=it, dl=dl: (k2read(dl), accum(it, pk2[mt], V_K2F + 8 * (dl - 2)),
                                                   accum(it, pk2[mt] + 4, V_K2F + 8 * (dl - 2) + 4))))
            if mt in mt3 and 4 <= dl <= 7:
                o.append((1, lambda it=it, dl=dl: (k3read(dl), accum(it, pk3[mt], V_K3F + 4 * (dl - 4)))))
        return o

    wlo = max(8 * tiles[0] - 16, -8)
    whi = 8 * tiles[-1]

    def stage(it):
        slot = tiles.index(it)
        t = V_US + 2 * (slot % 2)
        I(f'v_cvt_pk_bf16_f32 v{t}, v{acc[it]}, v{acc[it]+1}', prio=0)
        I(f'v_cvt_pk_bf16_f32 v{t+1}, v{acc[it]+2}, v{acc[it]+3}', prio=0)
        I(f'ds_write_b64 v{V_SW}, {vr(t, 2)} offset:{576*slot}', mr=['KG'], mw=[f'stg{it}'], prio=0)

    def store(it):
        slot = tiles.index(it)
        o = OUTR + 4 * (slot % 2)

        def fn():
            stamp(a, late=True)
            a.barrier()
        L.append(Item(fn=fn, mr=[f'stg{it}'], mw=['bar', f'pub{it}'], cost=8, delay=0 if it == tiles[-1] else opt.get('bdelay', 128)))
        I(f'ds_read_b64_tr_b16 {vr(o, 2)}, v{V_SR} offset:{576*slot}', mr=[f'pub{it}'], prio=0)
        I(f'ds_read_b64_tr_b16 {vr(o+2, 2)}, v{V_SR2} offset:{576*slot}', mr=[f'pub{it}'], prio=0)
        I(f's_mov_b32 s{S_TILE}, {it*524288}', prio=0)
        I(f'buffer_store_dwordx4 {vr(o, 4)}, v{V_OUT}, {sr(S_OUT, 4)}, s{S_TILE} offen', prio=0)

    kd_done = set()

    def direct(w):
        for it in tiles:
            s = 8 * it - w
            if 0 <= s <= 16 and s not in kd_done:
                kdread(s)
                kd_done.add(s)
        I(f'ds_read_b128 {vr(ring[(w - wlo) % len(ring)], 4)}, v{V_UF} offset:{uoff + 64*w + 32}')
        for it in tiles:
            s = 8 * it - w
            if 0 <= s <= 16:
                accum(it, V_KD + 4 * s, ring[(w - wlo) % len(ring)])
                if s == 0:
                    stage(it)
                    store(it)

    def transpose(pair):
        I(f's_mov_b32 m0, s{S_MB if pair else S_MA}')
        for q in range(4):
            for hi_ in range(2):
                t = V_G + 8 * pair + 2 * q + hi_
                I(f'v_perm_b32 v{t}, v{V_URAW+8*pair+4+q}, v{V_URAW+8*pair+q}, s{S_SELHI if hi_ else S_SELLO}', mr=[f'gate{pair}'])
                I(f'ds_write_addtid_b32 v{t} offset:{(2*q+hi_)*US}')

    def gate(pair):
        [x for x in L if x.kind == 'lds'][-1].mw.add(f'gate{pair}')
    L += opreads
    if opt.get('tr0', 1) == 0:
        gate(0); transpose(0)
        I(f's_mov_b32 m0, s{S_BASE}')
    L += kmfma
    mark()
    I(f'v_add_f32 v{D}, v{D}, v{V_DSK}')
    t1(); t23(); kfix()
    if opt.get('tr0', 1) == 1:
        gate(0); transpose(0)
    pre = opt.get(f'pre{role}', 8)
    order = []
    for w in range(wlo, whi + 1):
        for it in tiles:
            s_ = 8 * it - w
            if 0 <= s_ <= 16 and s_ not in order:
                order.append(s_)
    if opt.get(f'prek{role}', role):
        for dl in (4, 3, 2):
            k2read(dl)
        for dl in d3:
            k3read(dl)
    for s_ in order[:pre]:
        kdread(s_)
        kd_done.add(s_)
    gate(1); transpose(1)
    schedule(a, L, verbose=True, merge=opt.get('merge', 40), group=opt.get('grp', 1))
    L.clear()
    stamp(a, always=True)
    a.barrier()
    stamp(a, late=True)
    for mt in mts[:2]:
        gread(mt)
    stream, need = [], {}
    for k, mt in enumerate(mts):
        if k == 0:
            stream += box_units(mt)
        if k + 1 < len(mts):
            stream += box_units(mts[k + 1])
        stream += dil_units(mt)
        for it in tiles:
            if it - mt >= 2:
                need[it] = len(stream)
    lead = opt.get(f'lead{role}', 4)
    rate = opt.get(f'rate{role}', 25 if role == 1 else 10)
    si, credit = 0, 0
    while si < min(lead, len(stream)):
        stream[si][1]()
        si += 1
    for w in range(wlo, whi + 1):
        credit += rate
        must = need.get(w // 8, 0) if w % 8 == 0 and w >= 0 else 0
        while si < len(stream) and (credit >= 10 * stream[si][0] or si < must):
            credit -= 10 * stream[si][0]
            stream[si][1]()
            si += 1
        direct(w)
    assert si == len(stream)
    schedule(a, L, verbose=True, ladder=opt.get('ladder', 0), merge=opt.get('merge', 40), ahead=opt.get('ahead', 16),
             lds_lat=opt.get('lat', 110), inorder_mfma=opt.get('inord', 0), group=opt.get('grp', 1),
             drop=[n for b_, n in enumerate(['mfma', 'valu', 'ldsr', 'ldsw']) if opt.get('drop', 0) >> b_ & 1])
    stamp(a, late=True)


HEADER = open('standalone__ssm_conv_s4__prompt.s.ref').read().split('; Override launch')[0]


def build(opt):
    body, a, b = gen(opt)
    s = HEADER
    s += f'; @launch grid=(256,1,1) block=(512,1,1) lds={LDS_BYTES}\n'
    s += '.amdgcn_target "amdgcn-amd-amdhsa--gfx950"\n.text\n'
    s += f'.globl {KNAME}\n.p2align 8\n.type {KNAME},@function\n{KNAME}:\n'
    s += body
    s += 'L_end:\n    s_endpgm\n'
    s += '; per-lane LDS offsets (16-bit pairs) and the 0/1 band matrices, read as data\n.p2align 7\nL_tbl:\n' + tables()
    s += f'''.section .rodata,"a"
.p2align 6
.amdhsa_kernel {KNAME}
  .amdhsa_next_free_vgpr 256
  .amdhsa_next_free_sgpr 102
  .amdhsa_accum_offset 256
  .amdhsa_group_segment_fixed_size 0
  .amdhsa_kernarg_size 96
  .amdhsa_user_sgpr_count 2
  .amdhsa_user_sgpr_kernarg_segment_ptr 1
  .amdhsa_system_sgpr_workgroup_id_x 1
.end_amdhsa_kernel
'''
    return s, a, b


if __name__ == '__main__':
    out = sys.argv[1]
    opt = {}
    for kv in sys.argv[2:]:
        k, v = kv.split('=')
        opt[k] = int(v)
    s, a, b = build(opt)
    open(out, 'w').write(s)
    print('role0+common', a.stats, 'nops', a.nops, '| role1', b.stats, 'nops', b.nops)
```

```python
import sys
from asmlib import Asm, vr, sr, Item, schedule

KNAME = 'standalone__ssm_conv_s4__prompt_kernel'

RS = 16320
ROW = 272
NROWS = 54
UT = 8 * RS
US = 4160
LDS_BYTES = UT + 8 * US
BAND = 4096
STG = 18 * ROW
T2 = NROWS * ROW
T2B = 376
T3 = T2 + 820
assert T3 + 316 <= RS and LDS_BYTES <= 163840 and T2 % 16 == 0

XROW = {0: 15, 1: 5, 2: 19, 3: 20, 4: 3, 5: 4, 6: 9, 7: 8, 8: 21, 256: 12, 258: 14, 260: 11, 262: 7, 264: 2, 516: 13, 520: 18,
        772: 10, 776: 6, 1032: 1, 1288: 17, 1544: 0, 1800: 16}
XV = [(v, 256 + [0, 0, 2, 4, 4, 4, 6, 8, 8][v]) for v in range(9)] + [(516, 772), (520, 776), (1032, 1544), (1288, 1800)]
XOF = [XV[min(4 * (r >> 3) + (r & 3), 12)][(r >> 2) & 1] for r in range(32)]
ALPHA = {7: 0, 8: 1, 1: 2, 2: 3, 3: 4, 4: 5, 5: 6, 6: 7}


def mu(g, e):
    return 16 * (g >> 1) + 4 * (g & 1) + 2 * (e >> 2) + 8 * (1 - ((e >> 1) & 1)) + (e & 1)


def t1_dword(copy, r, n):
    return 68 * (1 + ALPHA[r]) + n if copy == 0 else 68 * (9 + ALPHA[r]) + 1 + n


S_U, S_OUT = 24, 28
S_WAVE, S_ROLE, S_CG, S_BASE, S_MA, S_UB = 32, 33, 34, 35, 36, 37
S_T = 38
S_SELLO, S_SELHI, S_MB, S_HIMASK = 48, 49, 50, 51
S_L0, S_L032 = 52, 54
S_TILE = 56
S_KN = 57
S_QD = 58
S_UFULL = 96
S_STAMP = 60

(V_LANE, V_UF, V_K1A, V_K1B, V_K2, V_K3, V_SW, V_SR, V_OUT, V_ZERO, V_SR2,
 V_UL2, V_UL3, V_USW, V_BR,
 V_LP, V_YR, V_XR, V_DSK,
 V_EW, V_ESEL, V_T3W, V_FREE) = range(1, 24)
V_US = 24
V_BAND = 28
V_ACC = 56
V_KD = 76
V_K2F = 144
V_K3F = 168
V_PK = 184
V_D = 208
V_G = 224
V_TT = 248
V_URAW = [56, 60, 240, 244]
V_PAR = 72
V_CC = 80
V_W = 86
V_FR = 144
V_TMP = 224


def edge_list():
    Z, A_, B_, K0 = 0x0c0c, 0x0504, 0x0302, 0x0100
    tapsel = lambda t: K0 if t == 0 else A_ if 512 <= t <= 514 else B_ if 515 <= t <= 517 else Z
    need = {}
    for s_ in range(17):
        for l in range(64):
            f, g = l & 15, l >> 4
            for beta in range(2):
                tau = f + 5 + 32 * s_ - 16 * (g >> 1) - 4 * (g & 1) - 2 * beta
                n = (tau - 1) >> 3
                r = tau - 8 * n
                cp = (n - 1) & 1
                for nn in (n - 1, n):
                    if not 0 <= nn < 64:
                        t = 8 * nn + r
                        sel = tapsel(t) | (tapsel(t - 1) << 16)
                        dw = t1_dword(cp, r, nn)
                        assert need.setdefault(dw, sel) == sel
    data = {t1_dword(cp, r, n) for cp in range(2) for r in ALPHA for n in range(64)}
    assert not data & set(need)
    e = sorted((dw, sel) for dw, sel in need.items() if not 64 <= dw < 68)
    assert len(e) <= 64
    return e + [e[-1]] * (64 - len(e))


EDGE = edge_list()


def lane_consts(l):
    c, h, f, g = l & 31, l >> 5, l & 15, l >> 4

    def k1(beta):
        tau = f + 5 - 16 * (g >> 1) - 4 * (g & 1) - 2 * beta
        n = (tau - 1) >> 3
        return 4 * t1_dword((n - 1) & 1, tau - 8 * n, n - 1)
    a2 = 8 * (f - 4 * g + 12)
    d = (l & 15) >> 1
    pos = 2 * (d & 3) + (1 - (d >> 2))
    return {
        V_YR: ROW * c + 16 * h,
        V_XR: ROW * (32 + XROW[XOF[c]]) + 16 * h,
        V_K1A: k1(0),
        V_K1B: k1(1),
        V_K2: T2 + (a2 if a2 % 16 == 0 else a2 + T2B),
        V_K3: T3 + 4 * (f - 4 * g + 12),
        V_EW: 4 * EDGE[l][0],
        V_T3W: T3 + 60 + 128 * h + 2 * c,
        V_SW: STG + 144 * g + 8 * f,
        V_UF: 32 * f + 16 * g,
        V_USW: (4128 if l < 16 else 0) + 4 * pos + 2 * (l & 1),
        V_SR: (f >> 2) * RS + STG + 144 * (f & 3) + 8 * (g & 1),
    }


LC_ORDER = [V_YR, V_XR, V_USW, V_UF, V_K1A, V_K1B, V_K2, V_K3, V_EW, V_T3W, V_SW, V_SR]
LC_BASE = {V_UF: S_UB, V_USW: S_UB, V_SR: S_QD}


def tables():
    words = []
    for (lo, hi, one) in [(6, 10, 0x3f80), (11, 13, 0x3f80), (14, 18, 0x3f80), (19, 21, 0x3f80), (5, 11, 0x3f80), (12, 20, 0x3f80),
                          (5, 5, 1)]:
        for l in range(64):
            f, g = l & 15, l >> 4
            e = [one if lo <= f + 21 - mu(g, k) <= hi else 0 for k in range(8)]
            words += [e[2 * q] | (e[2 * q + 1] << 16) for q in range(4)]
    for half in range(2):
        for l in range(64):
            lc = lane_consts(l)
            v = [lc[r] for r in LC_ORDER] + [0, 0, EDGE[l][1] & 0xffff, EDGE[l][1] >> 16]
            assert all(0 <= x < 65536 for x in v) and len(v) == 16
            for q in range(4):
                k = 8 * half + 2 * q
                words.append(v[k] | (v[k + 1] << 16))
    s = ''
    for k in range(0, len(words), 8):
        s += '.long ' + ', '.join(f'0x{w:08x}' for w in words[k:k + 8]) + '\n'
    return s


def ssize(t):
    import re
    if t.split()[0].startswith(('s_movk', 's_nop', 's_cbranch', 's_setprio')):
        return 4
    for o in t.split(None, 1)[1].split(','):
        o = o.strip()
        if re.fullmatch(r'-?(0x[0-9a-f]+|\d+)', o) and not -16 <= int(o, 0) <= 64:
            return 8
    return 4


def gen(opt):
    a = Asm()
    stamp_n = [0]

    def stamp(a, late=False, always=False):
        if opt.get('stamps') and (always or ((opt.get('stamps') == 2) == late and opt.get('stamps') < 4) or opt.get('stamps') == 3):
            a.raw(f'    {"s_memrealtime" if opt.get("rt") else "s_memtime"} {sr(S_STAMP + 2*stamp_n[0], 2)}')
            stamp_n[0] += 1

    def ampstamp(k):
        if opt.get('stamps') == 5:
            stamp(a, always=True)
        if opt.get('amp') and opt.get('ampat', 0) == k:
            a.raw(f'    s_memrealtime s[100:101]')

    if opt.get('stamps') or opt.get('spin') or opt.get('amp'):
        a.raw(f'    s_memrealtime {sr(90, 2)}')
    stamp(a, always=True)
    a(f's_load_dwordx16 s[4:19], s[0:1], 0')
    a(f's_load_dwordx4 s[20:23], s[0:1], 64')
    if opt.get('stamps'):
        a(f's_load_dwordx2 s[94:95], s[0:1], 88')
    a('s_cmp_ge_u32 s2, 256')
    a('s_cbranch_scc1 L_end')
    TB = V_TMP
    X0, X1, X2, X3 = V_TMP + 8, V_TMP + 9, V_TMP + 10, V_TMP + 11
    UL0, UL1 = V_TMP + 12, V_TMP + 13
    a(f's_getpc_b64 {sr(S_T, 2)}')
    a.label('L_pc')
    a(f"""
    v_readfirstlane_b32 s{S_WAVE}, v0
    v_lshlrev_b32 v{X0}, 4, v0
    s_add_u32 s{S_T+2}, s{S_T}, L_tbl-L_pc
    s_addc_u32 s{S_T+3}, s{S_T+1}, 0
    s_lshl4_add_u32 m0, s{S_WAVE}, {BAND}
    s_cmp_lg_u32 s{S_WAVE}, {7*64}
    s_cbranch_scc1 L_notb
    """)
    a.raw(f'    global_load_lds_dwordx4 v{X0}, {sr(S_T+2, 2)} offset:1024')
    if opt.get('prefetch', 1):
        npf = opt.get('npf', 4)
        a(f's_lshr_b32 s{S_T+4}, s2, 3')
        a(f'v_and_b32 v{X1}, {npf-1}, v0')
        a(f'v_mad_u32_u24 v{X1}, v{X1}, {128//npf}, s{S_T+4}')
        a(f'v_and_b32 v{X1}, 0x7f, v{X1}')
        a(f'v_lshlrev_b32 v{X1}, 7, v{X1}')
        a.raw(f'    global_load_dword v{V_TT}, v{X1}, {sr(S_T, 2)}')
    a.label('L_notb')
    a(f'global_load_lds_dwordx4 v{X0}, {sr(S_T+2, 2)}')
    a(f"""
    v_and_b32 v{V_LANE}, 63, v0
    s_lshr_b32 s{S_WAVE}, s{S_WAVE}, 6
    s_and_b32 s{S_T+2}, s2, 7
    s_bfe_u32 s{S_T+4}, s2, 0x20003
    s_lshr_b32 s{S_T+5}, s2, 6
    s_lshl2_add_u32 s{S_T+4}, s{S_T+5}, s{S_T+4}
    s_lshl4_add_u32 s{S_T+2}, s{S_T+2}, s{S_T+4}
    s_lshl_b32 s{S_CG}, s{S_T+2}, 4
    s_lshl_b32 s{S_T+5}, s{S_T+2}, 11
    s_lshl1_add_u32 s{S_T+2}, s{S_WAVE}, s{S_CG}
    v_lshl_add_u32 v{X1}, v0, 2, s{S_T+5}
    v_mov_b32 v{X2}, s{S_T+2}
    s_bfe_u32 s{S_ROLE}, s2, 0x10005
    v_lshl_add_u32 v{X3}, v{V_LANE}, 11, v{X2}
    v_add_u32 v{X3}, {2043*2048}, v{X3}
    v_and_b32 v{V_LP}, 1, v0
    v_xor_b32 v{V_LP}, 1, v{V_LP}
    v_bfe_u32 v{X0}, v0, 1, 2
    v_lshl_add_u32 v{V_LP}, v{V_LP}, 2, v{X0}
    v_and_or_b32 v{V_LP}, v0, 56, v{V_LP}
    s_add_u32 s{S_T+8}, s{S_T+4}, s{S_WAVE}
    s_and_b32 s{S_T+8}, s{S_T+8}, 7
    s_lshl_b32 s{S_T+2}, s{S_T+8}, 7
    s_add_u32 s{S_T+3}, s{S_T+2}, s{S_ROLE}
    s_sub_u32 s{S_T+2}, s{S_T+2}, s{S_ROLE}
    s_sub_u32 s{S_T+3}, s{S_T+3}, 5
    s_sub_u32 s{S_T+2}, s{S_T+2}, 4
    s_lshl_b32 s{S_T+3}, s{S_T+3}, 11
    s_lshl_b32 s{S_T+2}, s{S_T+2}, 11
    v_lshl_add_u32 v{UL0}, v{V_LP}, 12, s{S_T+3}
    v_lshl_add_u32 v{UL1}, v{V_LP}, 12, s{S_T+2}
    s_mov_b32 s{S_U+3}, 0x00020000
    s_mov_b32 s{S_OUT+3}, 0x00020000
    s_mov_b32 s{S_OUT+2}, 4194304
    s_mov_b32 s{S_SELLO}, 0x01000504
    s_cmp_eq_u32 s{S_ROLE}, 0
    s_cselect_b32 s{S_U+2}, {1280*2048}, s{S_OUT+2}
    s_cselect_b32 s{S_SELLO}, 0x05040100, s{S_SELLO}
    s_cselect_b32 s{S_T+2}, 4, 0
    v_add_u32 v{V_UL2}, 0x200000, v{UL0}
    v_add_u32 v{V_UL3}, 0x200000, v{UL1}
    s_add_u32 s{S_MA}, s{S_T+8}, s{S_T+2}
    s_add_u32 s{S_MB}, s{S_MA}, 8
    s_and_b32 s{S_MB}, s{S_MB}, 15
    s_lshl_b32 s{S_MA}, s{S_MA}, 8
    s_lshl_b32 s{S_MB}, s{S_MB}, 8
    """)
    ampstamp(10)
    a.wait(lgkm=0)
    ampstamp(5)
    a(f'global_load_ushort v{V_PAR+6}, v{X2}, s[18:19]')
    for k in range(6):
        a(f'global_load_dword v{V_PAR+k}, v{X1}, s[{6+2*k}:{7+2*k}]')
        if k == 1 and opt.get('split', 1):
            a('s_barrier')
    a(f'global_load_ushort v{V_PAR+7}, v{X2}, s[20:21]')
    a(f"""
    s_mov_b64 {sr(S_U, 2)}, s[4:5]
    s_mov_b64 {sr(S_OUT, 2)}, s[22:23]
    buffer_load_ushort v{V_US}, v{X3}, {sr(S_U, 4)}, 0 offen
    """)
    stamp(a)

    def uload(k):
        if opt.get('nou', 0) > 3 - k:
            return
        a(f'buffer_load_dwordx4 {vr(V_URAW[k], 4)}, v{[UL0, UL1, V_UL2, V_UL3][k]}, {sr(S_U, 4)}, s{S_CG} offen')
    ampstamp(13)
    if not opt.get('onebar', 1):
        a('s_barrier')
        uload(0); uload(1)
    a(f"""
    s_mul_i32 s{S_UB}, s{S_WAVE}, {US}
    s_add_u32 s{S_UB}, s{S_UB}, {UT}
    s_mov_b32 m0, s{S_UB}
    v_mov_b32 v{V_ZERO}, 0
    s_mul_i32 s{S_BASE}, s{S_WAVE}, {RS}
    v_mov_b32 v{X0}, 0x3f80
    v_lshlrev_b32 v{V_BR}, 4, v{V_LANE}
    ds_write_addtid_b32 v{V_ZERO} offset:{32+512}
    ds_write_addtid_b32 v{V_ZERO} offset:{32+768}
    s_mov_b32 m0, s{S_BASE}
    s_mov_b64 {sr(S_L0, 2)}, 1
    ds_write_addtid_b32 v{V_ZERO} offset:16
    ds_write_addtid_b32 v{X0} offset:0
    ds_write_addtid_b32 v{V_ZERO} offset:{T2}
    ds_write_addtid_b32 v{V_ZERO} offset:{T2+256}
    ds_write_addtid_b32 v{V_ZERO} offset:{T2+640}
    s_add_u32 s{S_MA}, s{S_MA}, {UT+32}
    s_add_u32 s{S_MB}, s{S_MB}, {UT+32}
    s_add_u32 s{S_SELHI}, s{S_SELLO}, 0x02020202
    s_mov_b32 s{S_HIMASK}, 0xffff0000
    s_lshl_b32 s{S_QD}, s{S_WAVE}, 4
    s_lshl_b32 s{S_T+5}, s{S_WAVE}, 16
    s_add_u32 s{S_T+5}, s{S_T+5}, s{S_CG}
    """)
    if opt.get('pads', 2) == 2:
        a(f"""
        s_mov_b64 exec, 0
        s_cmp_eq_u32 s{S_WAVE}, 0
        s_cbranch_scc1 L_main1
        s_lshl1_add_u32 s{S_T+2}, s{S_WAVE}, s{S_ROLE}
        s_cmp_eq_u32 s{S_T+2}, 2
        s_cbranch_scc1 L_role0
        s_cmp_eq_u32 s{S_T+2}, 3
        s_cbranch_scc1 L_role1
        """)
        a.label('L_back0')
        a.label('L_back1')
        a('s_mov_b64 exec, -1')
    if opt.get('spf', 0):
        a.raw(f'    s_load_dword s{S_KN}, {sr(S_T, 2)}, L_main1-L_pc')
        a.raw(f'    s_load_dword s{S_KN}, {sr(S_T, 2)}, L_role0-L_pc')
        a.raw(f'    s_load_dword s{S_KN}, {sr(S_T, 2)}, L_role1-L_pc')
    ampstamp(12)
    a.wait(vm=len(a.vm) - 1)
    ampstamp(14)
    a('s_barrier')
    if opt.get('onebar', 1):
        uload(0); uload(1)
    ampstamp(6)
    a(f'ds_read_b128 {vr(TB, 4)}, v{V_BR} offset:{BAND + 7*1024}')
    a(f'ds_read_b128 {vr(TB+4, 4)}, v{V_BR} offset:{BAND + 8*1024}')
    for k in range(7):
        a(f'ds_read_b128 {vr(V_BAND+4*k, 4)}, v{V_BR} offset:{BAND + 1024*k}')

    def lcadd(r):
        k = LC_ORDER.index(r)
        return (f'v_add_u32_sdwa v{r}, s{LC_BASE.get(r, S_BASE)}, v{TB + k//2} dst_sel:DWORD dst_unused:UNUSED_PAD '
                f'src0_sel:DWORD src1_sel:WORD_{k & 1}')
    later_v1 = [lcadd(r) for r in LC_ORDER if r not in (V_YR, V_XR, V_USW)] + [
        f'v_mov_b32 v{V_ESEL}, v{TB+7}', f'v_add_u32 v{V_SR2}, {4*RS}, v{V_SR}',
        f'v_cmp_gt_u32 vcc, 32, v{V_LANE}', f'v_lshl_add_u32 v{V_OUT}, v{V_LANE}, 11, s{S_T+5}',
        f'v_cndmask_b32 v{V_OUT}, -1, v{V_OUT}, vcc']
    ampstamp(7)
    stamp(a)

    DT = V_CC + 4
    a(f'v_lshlrev_b32 v{DT}, 16, v{V_PAR+6}')
    ampstamp(1)
    a(f'''
    v_mul_f32 v{DT}, 0x3fb8aa3b, v{DT}
    v_exp_f32 v{DT}, v{DT}
    v_cvt_pk_bf16_f32 v{DT}, v{DT}, v{DT}
    v_lshlrev_b32 v{DT}, 16, v{DT}
    v_mul_f32 v{V_CC}, 0x3fb8aa3b, v{DT}
    v_mul_f32 v{V_CC+1}, 0.15915494, v{DT}
    v_mul_f32 v{V_CC+2}, 0x43800000, v{V_CC}
    v_mul_f32 v{V_CC+3}, 0x43800000, v{V_CC+1}
    ''')
    stamp(a)

    names = ['z', 'z2', 'B', 'C', 'E1', 'E2', 'E4', 'EH', 'P0', 'P1', 'P2', 'P3', 'P4', 'P5', 'P6', 'P8',
             'Q0', 'Q1', 'Q2', 'Q3', 'M', 'E8', 't0', 't1', 't2', 't3']
    R = {n: V_W + 2 * k for k, n in enumerate(names)}
    assert V_W + 2 * len(names) <= V_FR
    cv = [V_TT + k for k in range(4)]
    cnt = [0]

    def p(n):
        return vr(R[n], 2)

    def cmul(d, x, y):
        t = 't%d' % (cnt[0] % 4)
        cnt[0] += 1
        return [f'v_pk_mul_f32 {p(t)}, {p(x)}, {p(y)} op_sel_hi:[1,0]',
                f'v_pk_fma_f32 {p(d)}, {p(x)}, {p(y)}, {p(t)} op_sel:[1,1,0] op_sel_hi:[0,1,1] neg_lo:[1,0,0]']

    def cmul_np(d, x, y):
        t = R['t%d' % (cnt[0] % 4)]
        cnt[0] += 1
        x, y, d = R[x], R[y], R[d]
        return [f'v_mul_f32 v{t}, v{x}, v{y}', f'v_mul_f32 v{t+1}, v{x+1}, v{y}',
                f'v_fma_f32 v{d}, -v{x+1}, v{y+1}, v{t}', f'v_fma_f32 v{d+1}, v{x}, v{y+1}, v{t+1}']

    def put(n, row, neg):
        c = cv[cnt[0] % len(cv)]
        return [f'v_cvt_pk_bf16_f32 v{c}, v{R[n]}, {"-" if neg else ""}v{R[n]+1}',
                f'ds_write_addtid_b32 v{c} offset:{row*ROW}']

    def ux(d, x, y, val):
        return cmul(d, x, y) + put(d, 32 + XROW[val], True)

    def uy(d, x, y, val):
        return cmul(d, x, y) + put(d, val // 8, False)

    def setup(ps, packed):
        o = []

        def unpack(k, n, h):
            if ps == 0:
                o.append(f'v_lshlrev_b32 v{R[n]+h}, 16, v{V_PAR+k}')
            else:
                o.append(f'v_and_b32 v{R[n]+h}, s{S_HIMASK}, v{V_PAR+k}')
        z, z2, B, E1, EH = R['z'], R['z2'], R['B'], R['E1'], R['EH']
        unpack(0, 'z', 0); unpack(1, 'z', 1)
        if packed:
            o += [f"v_pk_mul_f32 {p('z2')}, {p('z')}, {vr(V_CC+2, 2)}",
                  f"v_pk_mul_f32 {p('z')}, {p('z')}, {vr(V_CC, 2)}"]
        else:
            o += [f'v_mul_f32 v{z2}, v{z}, v{V_CC+2}', f'v_mul_f32 v{z2+1}, v{z+1}, v{V_CC+3}',
                  f'v_mul_f32 v{z}, v{z}, v{V_CC}', f'v_mul_f32 v{z+1}, v{z+1}, v{V_CC+1}']
        o += [f'v_fract_f32 v{z+1}, v{z+1}', f'v_fract_f32 v{z2+1}, v{z2+1}',
              f'v_exp_f32 v{z}, v{z}', f'v_cos_f32 v{E1}, v{z+1}', f'v_sin_f32 v{E1+1}, v{z+1}',
              f'v_exp_f32 v{z2}, v{z2}', f'v_cos_f32 v{EH}, v{z2+1}', f'v_sin_f32 v{EH+1}, v{z2+1}']
        if packed:
            o += [f"v_pk_mul_f32 {p('E1')}, {p('E1')}, {p('z')} op_sel_hi:[1,0]",
                  f"v_pk_mul_f32 {p('EH')}, {p('EH')}, {p('z2')} op_sel_hi:[1,0]"]
            o += cmul('E2', 'E1', 'E1') + cmul('E4', 'E2', 'E2')
        else:
            o += [f'v_mul_f32 v{E1}, v{E1}, v{z}', f'v_mul_f32 v{E1+1}, v{E1+1}, v{z}',
                  f'v_mul_f32 v{EH}, v{EH}, v{z2}', f'v_mul_f32 v{EH+1}, v{EH+1}, v{z2}']
            o += cmul_np('E2', 'E1', 'E1') + cmul_np('E4', 'E2', 'E2')
        na = len(o)
        unpack(2, 'B', 0); unpack(3, 'B', 1); unpack(4, 'C', 0); unpack(5, 'C', 1)
        if packed:
            o += [f"v_pk_mul_f32 {p('B')}, {p('B')}, {vr(DT, 2)} op_sel_hi:[1,0]"]
        else:
            o += [f'v_mul_f32 v{B}, v{B}, v{DT}', f'v_mul_f32 v{B+1}, v{B+1}, v{DT}']
        return o[:na], o[na:]

    def units():
        U = [uy('E8', 'E4', 'E4', 8), uy('Q1', 'E8', 'E8', 16), uy('Q2', 'Q1', 'E8', 24), uy('M', 'Q1', 'Q1', 32)]
        for st in range(1, 8):
            U += [uy('Q0', 'E8' if st == 1 else 'Q0', 'M', 8 + 32 * st), uy('Q1', 'Q1', 'M', 16 + 32 * st),
                  uy('Q2', 'Q2', 'M', 24 + 32 * st)]
            if st < 7:
                U.append(uy('Q3', 'M' if st == 1 else 'Q3', 'M', 32 + 32 * st))
        assert len(U) == 31
        U += [ux('P0', 'C', 'B', 0), ux('P1', 'P0', 'E1', 1), ux('P2', 'P0', 'E2', 2), ux('P3', 'P1', 'E2', 3),
              ux('P4', 'P0', 'E4', 4), ux('P5', 'P1', 'E4', 5), ux('P6', 'P2', 'E4', 6), ux('P5', 'P3', 'E4', 7),
              ux('P8', 'P0', 'E8', 8), ux('P0', 'P0', 'EH', 256), ux('P2', 'P2', 'EH', 258), ux('P4', 'P4', 'EH', 260),
              ux('P6', 'P6', 'EH', 262), ux('P8', 'P8', 'EH', 264), ux('P4', 'P4', 'EH', 516),
              ux('P8', 'P8', 'EH', 520), ux('P4', 'P4', 'EH', 772), ux('P8', 'P8', 'EH', 776), ux('P8', 'P8', 'EH', 1032)]
        tail = [ux('P8', 'P8', 'EH', 1288), ux('P8', 'P8', 'EH', 1544), ux('P8', 'P8', 'EH', 1800)]
        return U, tail

    def yread(s):
        return f'ds_read_b128 {vr(V_FR+8*s+4, 4)}, v{V_YR} offset:{32*s}'

    def opreads():
        o = []
        for s in range(8):
            o.append(Item(f'ds_read_b128 {vr(V_FR+8*s, 4)}, v{V_XR} offset:{32*s}', mw=['KG']))
            if not opt.get('yearly', 0):
                o.append(Item(yread(s), mw=['KG']))
        return o

    def kmfma(ps):
        return [Item(f'v_mfma_f32_32x32x16_bf16 {vr(V_D, 16)}, {vr(V_FR+8*s, 4)}, {vr(V_FR+8*s+4, 4)}, '
                     f'{"0" if (ps == 0 and s == 0) else vr(V_D, 16)}') for s in range(8)]

    def main(ps, extra):
        U, tail = units()
        a.raw('.p2align 3')
        pend = []
        nb = opt.get('wb', 1)
        lad = opt.get('klad', 0)
        for k, u_ in enumerate(U):
            if extra.get(k) or len(pend) >= nb:
                for ln in pend:
                    a(ln)
                pend = []
            for f in extra.get(k, ()):
                f()
            if opt.get('stamps') == 4 and k % 8 == 0 and ps == opt.get('sps', 1):
                stamp(a, always=True)
            if lad and k % lad == 0:
                a(f's_setprio {3 - (k // lad) % 4}')
                a('s_nop 0')
            for ln in u_[:-1]:
                a(ln)
            pend.append(u_[-1])
        for ln in pend:
            a(ln)
        if opt.get('skip3', 1):
            a(f's_cmp_eq_u32 s{S_ROLE}, 0')
            a(f's_cbranch_scc1 L_skip{ps}')
        keep = list(a.lgkm)
        for u_ in tail:
            for ln in u_:
                a(ln)
        if opt.get('skip3', 1):
            a.label(f'L_skip{ps}')
            a.lgkm = keep + [[]]
            a.lgkm.pop(len(keep) - 1)

    def extras(ps):
        ex = {}
        if opt.get('yearly', 0):
            for s in range(8):
                ex.setdefault(33 + 2 * s, []).append(lambda s=s: a(yread(s)))
        for k, key in ((2, 'u2'), (3, 'u3')):
            pos_ = opt.get(key, {2: 100, 3: 125}[k])
            if pos_ // 100 == ps:
                ex.setdefault(pos_ % 100, []).append(lambda k=k: uload(k))
        return ex

    sa, sb = setup(0, True)
    for ln in sa:
        a(ln)
    ampstamp(2)
    if opt.get('pads', 2) == 1:
        a(f's_cmp_lg_u32 s{S_WAVE}, 0')
        a('s_cbranch_scc1 L_back0')
        a('s_mov_b64 exec, 0')
        a('s_branch L_main1')
        a.label('L_back0')
        a('s_mov_b64 exec, -1')
    a.wait(lgkm=0)
    a('s_barrier')
    stamp(a)
    ex = extras(0)

    def bc0():
        stamp(a)
        for ln in sb:
            a(ln)
        a(f'v_lshlrev_b32 v{V_DSK}, 16, v{V_PAR+7}')
        a(f'v_cndmask_b32 v{V_DSK}, 0, v{V_DSK}, {sr(S_L0, 2)}')
        for r in (V_YR, V_XR, V_USW):
            a(lcadd(r))
        a(f'ds_write_b16 v{V_USW}, v{V_US}')
        a.raw('.p2align 3')
        stamp(a)
    ex.setdefault(31, []).insert(0, bc0)
    main(0, ex)
    stamp(a)
    sa, sb = setup(1, False)
    if opt.get('barm', 0):
        a('s_barrier')
    schedule(a, opreads() + [Item(x) for x in sa + sb] + kmfma(0), verbose=True, group=opt.get('grp', 1))
    if opt.get('pages', 1):
        a('s_branch L_main1')
        a.raw('.p2align 12')
    a.label('L_main1')
    if opt.get('pads', 2):
        a('s_cbranch_execz L_back0')
    if opt.get('pads', 2) == 1:
        a(f's_cmp_lg_u32 s{S_WAVE}, 0')
        a('s_cbranch_scc1 L_back1')
        a('s_mov_b64 exec, 0')
        a(f's_cmp_eq_u32 s{S_ROLE}, 0')
        a('s_cbranch_scc1 L_role0')
        a('s_branch L_role1')
        a.label('L_back1')
        a('s_mov_b64 exec, -1')
    if opt.get('bar1', 1):
        a('s_barrier')
    stamp(a)
    main(1, extras(1))
    ampstamp(3)
    stamp(a, always=True)
    if opt.get('uprobe'):
        a.wait(vm=2)
        stamp(a, always=True)
        a.wait(vm=0)
        ampstamp(4)
        stamp(a, always=True)
    if opt.get('barm', 0):
        a('s_barrier')

    a(f's_cmp_eq_u32 s{S_ROLE}, 0')
    a('s_cbranch_scc0 L_role1')
    b = a.fork()
    if opt.get('pages', 1):
        a('s_branch L_role0')
        a.raw('.p2align 12')
    a.label('L_role0')
    if opt.get('pads', 2):
        a('s_cbranch_execz L_back1')
    n0 = stamp_n[0]
    conv(a, 0, opt, stamp, opreads() + [Item(t) for t in later_v1], kmfma(1))
    finish(a, opt, stamp_n[0])
    stamp_n[0] = n0
    if opt.get('pages', 1):
        b.raw('.p2align 12')
    b.label('L_role1')
    if opt.get('pads', 2):
        b('s_cbranch_execz L_back1')
    conv(b, 1, opt, stamp, opreads() + [Item(t) for t in later_v1], kmfma(1))
    finish(b, opt, stamp_n[0])
    body = a.text() + b.text()
    return body, a, b


def finish(a, opt, nst):
    if opt.get('spin') or opt.get('amp'):
        lab = f'L_spin{id(a)}'
        a.wait(vm=0, lgkm=0)
        if opt.get('amp'):
            if opt.get('ampat'):
                a.raw('    s_sub_u32 s96, s100, s90')
                a.raw(f'    s_mul_i32 s96, s96, {opt["amp"]}')
                a.raw(f'    s_add_u32 s96, s96, 3000')
            else:
                a.raw(f'    s_memrealtime s[92:93]')
                a.raw('    s_waitcnt lgkmcnt(0)')
                a.raw('    s_sub_u32 s96, s92, s90')
                a.raw(f'    s_mul_i32 s96, s96, {opt["amp"]}')
        else:
            a.raw(f'    s_mov_b32 s96, {opt["spin"]}')
        a.label(lab)
        a.raw(f'    s_memrealtime s[92:93]')
        a.raw('    s_waitcnt lgkmcnt(0)')
        a.raw('    s_sub_u32 s92, s92, s90')
        a.raw('    s_cmp_lt_u32 s92, s96')
        a.raw(f'    s_cbranch_scc1 {lab}')
    if opt.get('stamps'):
        a.wait(vm=0, lgkm=0)
        a.raw(f'    {"s_memrealtime" if opt.get("rt") else "s_memtime"} {sr(S_STAMP + 2*nst, 2)}')
        a.raw(f'    s_memrealtime {sr(92, 2)}')
        a.raw('    s_waitcnt lgkmcnt(0)')
        a(f'v_mov_b32 v2, 0')
        for k in range(nst + 1):
            a(f's_sub_u32 s{S_T}, s{S_STAMP+2*k}, s{S_STAMP}')
            a(f'v_writelane_b32 v2, s{S_T}, {k}')
        a(f'v_writelane_b32 v2, s90, 14')
        a(f'v_writelane_b32 v2, s92, 15')
        a(f'v_writelane_b32 v2, s{S_ROLE}, 16')
        a(f's_lshl_b32 s{S_T}, s2, 3')
        a(f's_add_u32 s{S_T}, s{S_T}, s{S_WAVE}')
        a(f's_lshl_b32 s{S_T}, s{S_T}, 8')
        a(f'v_lshl_add_u32 v3, v{V_LANE}, 2, s{S_T}')
        a(f'global_store_dword v3, v2, s[94:95]')
    a('s_endpgm')


SEQ = {
    1: [
        [('T23',), ('T1',), ('KF',), ('B3', 0), ('G', 2), ('B2', 1), ('B3', 1), ('D3', 0, 5), ('D3', 0, 6), ('D3', 0, 7),
         ('B2', 2), ('B3', 2), ('FX', 5), ('G', 3), ('D2', 1, 5), ('D3', 1, 5), ('D3', 1, 6), ('D3', 1, 7), ('TRB',),
         ('B2', 3), ('FX', 6), ('D2', 2, 5), ('D2', 2, 6), ('D3', 2, 6), ('D3', 2, 7), ('D2', 3, 5), ('D2', 3, 6), ('G', 4),
         ('W', 24, 40), ('OUT', 5), ('B2', 4), ('G', 5), ('W', 41, 44), ('D2', 4, 6), ('W', 45, 48), ('OUT', 6),
         ('D2', 3, 7), ('B2', 5), ('B3', 3), ('FX', 7), ('D2', 4, 7), ('W', 49, 52), ('D2', 5, 7), ('D3', 3, 7), ('W', 53, 56), ('OUT', 7)],
    ],
    0: [
        [('T23',), ('T1',), ('KF',), ('B2', 0), ('B2', 1), ('B3', 0), ('D2', 0, 2), ('D2', 0, 3), ('D2', 1, 3), ('W', -8, 0), ('OUT', 0),
         ('W', 1, 4), ('TRB',), ('W', 5, 8), ('OUT', 1), ('G', 2), ('W', 9, 16), ('OUT', 2), ('W', 17, 24), ('OUT', 3),
         ('B2', 2), ('D2', 0, 4), ('D2', 1, 4), ('D3', 0, 4), ('FX', 4), ('W', 25, 28), ('D2', 2, 4), ('W', 29, 32), ('OUT', 4)],
        [('T23',), ('T1',), ('KF',), ('B2', 0), ('B2', 1), ('G', 2), ('B3', 0), ('B2', 2), ('D2', 0, 2), ('D2', 0, 3), ('D2', 1, 3),
         ('W', -8, 0), ('OUT', 0), ('W', 1, 4), ('TRB',), ('W', 5, 8), ('OUT', 1), ('W', 9, 16), ('OUT', 2), ('W', 17, 24), ('OUT', 3),
         ('D2', 0, 4), ('D2', 1, 4), ('D3', 0, 4), ('FX', 4), ('W', 25, 28), ('D2', 2, 4), ('W', 29, 32), ('OUT', 4)],
        [('T1',), ('T23',), ('KF',), ('B2', 0), ('B2', 1), ('B3', 0), ('W', -8, -5), ('D2', 0, 2), ('W', -4, 0), ('OUT', 0), ('TRB',),
         ('W', 1, 8), ('OUT', 1), ('G', 2), ('W', 9, 16), ('OUT', 2), ('D2', 0, 3), ('D2', 1, 3), ('W', 17, 24), ('OUT', 3),
         ('B2', 2), ('D2', 0, 4), ('D2', 1, 4), ('D3', 0, 4), ('FX', 4), ('W', 25, 28), ('D2', 2, 4), ('W', 29, 32), ('OUT', 4)],
        [('T23',), ('T1',), ('KF',), ('B2', 0), ('B2', 1), ('B3', 0), ('D2', 0, 2), ('D2', 0, 3), ('D2', 1, 3), ('W', -8, 0), ('OUT', 0), ('TRB',),
         ('W', 1, 8), ('OUT', 1), ('G', 2), ('W', 9, 16), ('OUT', 2), ('W', 17, 24), ('OUT', 3),
         ('B2', 2), ('D2', 0, 4), ('D2', 1, 4), ('D3', 0, 4), ('FX', 4), ('W', 25, 28), ('D2', 2, 4), ('W', 29, 32), ('OUT', 4)],
        [('T23',), ('T1',), ('KF',), ('B2', 0), ('B2', 1), ('B3', 0), ('D2', 0, 2), ('D2', 0, 3), ('D2', 1, 3), ('D2', 0, 4), ('D2', 1, 4),
         ('D3', 0, 4), ('FX', 4), ('TRB',), ('W', -8, 0), ('OUT', 0),
         ('W', 1, 8), ('OUT', 1), ('G', 2), ('W', 9, 16), ('OUT', 2), ('W', 17, 24), ('OUT', 3),
         ('B2', 2), ('W', 25, 28), ('D2', 2, 4), ('W', 29, 32), ('OUT', 4)],
    ],
}


def conv(a, role, opt, stamp, opreads, kmfma):
    tiles = [0, 1, 2, 3, 4] if role == 0 else [5, 6, 7]
    uoff = 1024 if role == 0 else 0
    acc = {it: V_ACC + 4 * k for k, it in enumerate(tiles)}
    started = set()
    L = []

    def I(text, **kw):
        for ln in text.strip().split('\n'):
            if ln.strip():
                L.append(Item(ln.strip(), **kw))

    def mf(d, x, y, first):
        I(f'v_mfma_f32_16x16x32_bf16 {vr(d, 4)}, {vr(x, 4)}, {vr(y, 4)}, {"0" if first else vr(d, 4)}')

    def accum(it, x, y):
        mf(acc[it], x, y, it not in started)
        started.add(it)

    def mark():
        if opt.get('stamps'):
            last = [x for x in L if x.kind == 'mfma'][-1]
            tag = f'stamp{len(L)}'
            last.mw.add(tag)
            L.append(Item(fn=lambda: stamp(a, always=True), mw=[tag, 'stamps']))

    mt2 = sorted({it - d for it in tiles for d in (2, 3, 4) if it - d >= 0})
    mt3 = sorted({it - d for it in tiles for d in (4, 5, 6, 7) if it - d >= 0})
    mts = sorted(set(mt2) | set(mt3))
    d3 = sorted({it - mt for it in tiles for mt in mt3 if 4 <= it - mt <= 7})
    if role == 1:
        rawseq = [232, 68, 76] * 3 + [232, 68, 240] * 3
        G = {0: V_G, 1: V_G + 4, 2: V_G, 3: V_G + 4, 4: V_G, 5: V_G}
        pk2 = {mt: V_PK + 12 * (mt % 2) for mt in mt2}
        pk3 = {mt: V_PK + 12 * (mt % 2) + 8 for mt in mt3}
        tA = 1018
    else:
        rawseq = [232, 176, 200, 232, 176, 232, 176]
        G = {0: V_G, 1: V_G + 4, 2: V_G + 4}
        pk2 = {0: V_PK, 1: V_PK + 8, 2: V_PK + 16}
        pk3 = {0: V_K3F + 4}
        tA = 1018
    ring = [12, 16, V_D + 4, V_D, V_D + 12, V_D + 8, 20][:opt.get('ring', 7)]
    OUTR = V_TT

    def gread(mt):
        I(f'ds_read_b128 {vr(G[mt], 4)}, v{V_UF} offset:{uoff + 512*mt}', mr=['pubA' if 256 * mt + 250 <= tA else 'pubB'])
    D = V_D
    TA, TB, TC, TD = V_TT + 4, V_TT + 5, V_TT + 6, V_TT + 7
    KF = V_BAND + 24

    def t23():
        I(f"""
        v_mov_b32 v{TA}, v{D+10}
        v_cvt_pk_bf16_f32 v{TB}, v{D+11}, v{D+12}
        v_cvt_pk_bf16_f32 v{TC}, -v{D+10}, v{V_ZERO}
        v_mov_b32_dpp v{TA}, v{D+9} wave_shl:1 row_mask:0xf bank_mask:0xf
        v_cvt_pk_bf16_f32 v{TA}, v{D+10}, v{TA}
        """)
        I(f'ds_write_addtid_b32 v{TA} offset:{T2+120}', mw=['T23'])
        I(f'ds_write_addtid_b32 v{TA} offset:{T2+T2B+120}', mw=['T23'])
        I(f'ds_write_b16 v{V_T3W}, v{TB}', mw=['T23'])
        if role == 1:
            I(f'ds_write_b16_d16_hi v{V_T3W}, v{TB} offset:64', mw=['T23'])
        I(f'v_readlane_b32 s{S_KN}, v{TC}, 63')

    def kfix():
        for q in range(4):
            I(f'v_mul_u32_u24 v{KF+q}, s{S_KN}, v{KF+q}')

    k2_done, k3_done = set(), set()

    def k2read(dl):
        if dl in k2_done:
            return
        k2_done.add(dl)
        k = dl - 2
        for q in range(2):
            I(f'ds_read_b128 {vr(V_K2F+8*k+4*q, 4)}, v{V_K2} offset:{128*k + 16*q}', mr=['T23'])

    def k3read(dl):
        if dl in k3_done:
            return
        k3_done.add(dl)
        k = dl - 4
        I(f'ds_read2_b32 {vr(V_K3F+4*k, 2)}, v{V_K3} offset0:{16*k} offset1:{16*k+1}', mr=['T23'])
        I(f'ds_read2_b32 {vr(V_K3F+4*k+2, 2)}, v{V_K3} offset0:{16*k+2} offset1:{16*k+3}', mr=['T23'])

    def t1():
        for k, r in enumerate([8, 2, 3, 4, 5, 6, 7, 1]):
            t = V_TT + (k % 4)
            I(f'v_cvt_pk_bf16_f32 v{t}, v{D+r}, v{D+r-1}')
            I(f'ds_write_addtid_b32 v{t} offset:{4*t1_dword(0, r, 0)}', mr=['KG'], mw=['T1'])
            I(f'ds_write_addtid_b32 v{t} offset:{4*t1_dword(1, r, 0)}', mr=['KG'], mw=['T1'])
            if r == 8:
                I(f"""
                v_readlane_b32 s{S_T}, v{t}, 63
                v_cvt_pk_bf16_f32 v{TD}, v{D}, v{D+9}
                v_readlane_b32 s{S_T+1}, v{TD}, 0
                v_mov_b32 v{TD}, s{S_T}
                v_perm_b32 v{TD}, v{TD}, s{S_T+1}, v{V_ESEL}
                """)
        I(f'ds_write_b32 v{V_EW}, v{TD}', mr=['KG'], mw=['T1'])

    def kdread(s):
        I(f'ds_read_b64 {vr(V_KD+4*s, 2)}, v{V_K1A} offset:{16*s}', mr=['T1'])
        I(f'ds_read_b64 {vr(V_KD+4*s+2, 2)}, v{V_K1B} offset:{16*s}', mr=['T1'])

    ucount = [0]

    def unit(mt, b0, dst, stride):
        r = rawseq[ucount[0]]
        ucount[0] += 1
        mf(r, G[mt], V_BAND + 4 * b0, True)
        mf(r + 4, G[mt], V_BAND + 4 * b0 + 4, True)
        for jj in range(4):
            I(f'v_cvt_pk_bf16_f32 v{dst+stride*jj}, v{r+3-jj}, v{r+7-jj}')

    def token(t):
        k = t[0]
        if k == 'G':
            gread(t[1])
        elif k == 'B2':
            unit(t[1], 0, pk2[t[1]], 2)
            unit(t[1], 2, pk2[t[1]] + 1, 2)
        elif k == 'B3':
            unit(t[1], 4, pk3[t[1]], 1)
        elif k == 'D2':
            mt, it = t[1:]
            k2read(it - mt)
            accum(it, pk2[mt], V_K2F + 8 * (it - mt - 2))
            accum(it, pk2[mt] + 4, V_K2F + 8 * (it - mt - 2) + 4)
        elif k == 'D3':
            mt, it = t[1:]
            k3read(it - mt)
            accum(it, pk3[mt], V_K3F + 4 * (it - mt - 4))
        elif k == 'FX':
            accum(t[1], KF, G[t[1] - 4])
        elif k == 'W':
            for w in range(t[1], t[2] + 1):
                direct(w)
        elif k == 'KD':
            for s_ in t[1:]:
                if s_ not in kd_done:
                    kdread(s_)
                    kd_done.add(s_)
        elif k == 'T1':
            t1()
        elif k == 'T23':
            t23()
        elif k == 'KF':
            kfix()
        elif k == 'TRB':
            transpose(1)
        elif k == 'OUT':
            stage(t[1]); store(t[1])
        todo.discard(t)

    wlo = max(8 * tiles[0] - 16, -8)
    whi = 8 * tiles[-1]

    def stage(it):
        slot = tiles.index(it)
        t = V_US + 2 * (slot % 2)
        I(f'v_cvt_pk_bf16_f32 v{t}, v{acc[it]}, v{acc[it]+1}', prio=0)
        I(f'v_cvt_pk_bf16_f32 v{t+1}, v{acc[it]+2}, v{acc[it]+3}', prio=0)
        I(f'ds_write_b64 v{V_SW}, {vr(t, 2)} offset:{576*slot}', mr=['KG'], mw=[f'stg{it}'], prio=0)

    def store(it):
        slot = tiles.index(it)
        o = OUTR + 4 * (slot % 2)

        def fn():
            stamp(a, late=True)
            a.barrier()
        mb = bool(merge_b) and merge_b.pop()
        L.append(Item(fn=fn, mr=[f'stg{it}'] + ['uB'] * mb, mw=['bar', f'pub{it}'] + ['pubB'] * mb, cost=8,
                      delay=0 if it == tiles[-1] else opt.get('bdelay', 128)))
        I(f'ds_read_b64_tr_b16 {vr(o, 2)}, v{V_SR} offset:{576*slot}', mr=[f'pub{it}'], prio=0)
        I(f'ds_read_b64_tr_b16 {vr(o+2, 2)}, v{V_SR2} offset:{576*slot}', mr=[f'pub{it}'], prio=0)
        I(f's_mov_b32 s{S_TILE}, {it*524288}', prio=0)
        I(f'buffer_store_dwordx4 {vr(o, 4)}, v{V_OUT}, {sr(S_OUT, 4)}, s{S_TILE} offen', prio=0, mw=[f'st{it}'])
        if role == 0 and opt.get('wb2', 0) >> slot & 1:
            def wb():
                a(f's_lshr_b32 s{S_T+2}, s2, {opt.get("wbs", 3)}')
                a(f's_or_b32 s{S_T+2}, s{S_T+2}, s{S_WAVE}')
                a(f's_cbranch_scc1 L_wb{it}')
                a.raw('    buffer_wbl2 sc1')
                a.label(f'L_wb{it}')
            L.append(Item(fn=wb, mr=[f'st{it}'], cost=12))

    kd_done = set()
    merge_b = []

    def direct(w):
        for it in tiles:
            s = 8 * it - w
            if 0 <= s <= 16 and s not in kd_done:
                kdread(s)
                kd_done.add(s)
        I(f'ds_read_b128 {vr(ring[(w - wlo) % len(ring)], 4)}, v{V_UF} offset:{uoff + 64*w + 32}',
          mr=['pubA' if 32 * w + 266 <= tA else 'pubB'])
        for it in tiles:
            s = 8 * it - w
            if 0 <= s <= 16:
                accum(it, V_KD + 4 * s, ring[(w - wlo) % len(ring)])

    def transpose(pair):
        nm = 'AB'[pair]
        nb = opt.get(f'trb{role}', 1300) if pair else 0
        I(f's_mov_b32 m0, s{S_MB if pair else S_MA}')
        for q in range(4):
            for hi_ in range(2):
                t = V_US + (2 * q + hi_) % 4
                I(f'v_perm_b32 v{t}, v{V_URAW[2*pair+1]+q}, v{V_URAW[2*pair]+q}, s{S_SELHI if hi_ else S_SELLO}', notbefore=nb)
                I(f'ds_write_addtid_b32 v{t} offset:{(2*q+hi_)*US}', mw=['u' + nm])

        def fn():
            stamp(a, late=True)
            a.barrier()
        if pair and role == 0:
            merge_b.append(1)
            return
        L.append(Item(fn=fn, mr=['u' + nm], mw=['bar', 'pub' + nm], cost=8, delay=opt.get('udel', 32)))

    todo = set()
    for it in tiles:
        todo.add(('OUT', it))
        for mt in mts:
            if 2 <= it - mt <= 4:
                todo |= {('D2', mt, it), ('B2', mt), ('G', mt)}
            if 4 <= it - mt <= 7:
                todo |= {('D3', mt, it), ('B3', mt), ('G', mt)}
            if it - mt == 4:
                todo.add(('FX', it))
    L += opreads
    transpose(0)
    I(f's_mov_b32 m0, s{S_BASE}')
    for mt in (0, 1):
        token(('G', mt))
    L += kmfma
    mark()
    I(f'v_add_f32 v{D}, v{D}, v{V_DSK}')
    for t in SEQ[role][opt.get(f'seq{role}', 0)]:
        token(t)
    assert not todo, todo
    schedule(a, L, verbose=True, ladder=opt.get('ladder', 4), merge=opt.get('merge', 40), ahead=opt.get('ahead', 16),
             lds_lat=opt.get('lat', 110), inorder_mfma=opt.get('inord', 0), group=opt.get('grp', 1),
             drop=[n for b_, n in enumerate(['mfma', 'valu', 'ldsr', 'ldsw']) if opt.get('drop', 0) >> b_ & 1])
    stamp(a, late=True)


HEADER = open('standalone__ssm_conv_s4__prompt.s.ref').read().split('; Override launch')[0]


def build(opt):
    body, a, b = gen(opt)
    s = HEADER
    s += f'; @launch grid=(256,1,1) block=(512,1,1) lds={LDS_BYTES}\n'
    s += '.amdgcn_target "amdgcn-amd-amdhsa--gfx950"\n.text\n'
    s += f'.globl {KNAME}\n.p2align 8\n.type {KNAME},@function\n{KNAME}:\n'
    s += body
    s += 'L_end:\n    s_endpgm\n'
    s += '; per-lane LDS offsets (16-bit pairs) and the 0/1 band matrices, read as data\n.p2align 7\nL_tbl:\n' + tables()
    s += f'''.section .rodata,"a"
.p2align 6
.amdhsa_kernel {KNAME}
  .amdhsa_next_free_vgpr 256
  .amdhsa_next_free_sgpr 102
  .amdhsa_accum_offset 256
  .amdhsa_group_segment_fixed_size 0
  .amdhsa_kernarg_size 96
  .amdhsa_user_sgpr_count 2
  .amdhsa_user_sgpr_kernarg_segment_ptr 1
  .amdhsa_system_sgpr_workgroup_id_x 1
.end_amdhsa_kernel
'''
    return s, a, b


if __name__ == '__main__':
    out = sys.argv[1]
    opt = {}
    for kv in sys.argv[2:]:
        k, v = kv.split('=')
        opt[k] = int(v)
    s, a, b = build(opt)
    open(out, 'w').write(s)
    print('role0+common', a.stats, 'nops', a.nops, '| role1', b.stats, 'nops', b.nops)
```

```python
import re, copy

TRANS = ('v_exp_f32', 'v_log_f32', 'v_rcp_f32', 'v_rsq_f32', 'v_sqrt_f32', 'v_sin_f32', 'v_cos_f32')


def regs_of(tok):
    tok = tok.strip()
    tok = tok.lstrip('-')
    m = re.fullmatch(r'abs\((.*)\)', tok) or re.fullmatch(r'\|(.*)\|', tok)
    if m:
        tok = m.group(1)
    m = re.fullmatch(r'([vsa])(\d+)', tok)
    if m:
        return [tok]
    m = re.fullmatch(r'([vsa])\[(\d+):(\d+)\]', tok)
    if m:
        return [f'{m.group(1)}{i}' for i in range(int(m.group(2)), int(m.group(3)) + 1)]
    if tok in ('vcc', 'exec', 'm0'):
        return [tok]
    if tok in ('vcc_lo', 'vcc_hi'):
        return ['vcc']
    if tok in ('exec_lo', 'exec_hi'):
        return ['exec']
    return []


class Ins:
    __slots__ = ('text', 'op', 'dst', 'src', 'kind', 'srcC', 'srcAB', 'passes', 'wide_store', 'dpp')


def parse(text):
    t = text.strip()
    parts = t.split(None, 1)
    op = parts[0]
    rest = parts[1] if len(parts) > 1 else ''
    ops, depth, cur = [], 0, ''
    for ch in rest:
        if ch == '[':
            depth += 1
        if ch == ']':
            depth -= 1
        if ch == ',' and depth == 0:
            ops.append(cur)
            cur = ''
        else:
            cur += ch
    if cur.strip():
        ops.append(cur)
    if ops:
        ops[-1] = ops[-1].strip().split(' ')[0]
    ops = [o.strip() for o in ops]
    i = Ins()
    i.text, i.op = t, op
    i.srcC, i.srcAB, i.passes, i.wide_store = [], [], 0, False
    i.dpp = '_dpp' in op or 'row_' in rest or 'wave_sh' in rest or 'quad_perm' in rest
    R = [regs_of(o) for o in ops]
    flat = lambda l: [r for x in l for r in x]
    if op.startswith('v_mfma'):
        i.kind = 'mfma'
        i.dst = R[0]
        i.srcAB = R[1] + R[2]
        i.srcC = R[3]
        i.src = i.srcAB + i.srcC
        i.passes = 8 if '32x32' in op else 4
    elif op.startswith('v_'):
        i.kind = 'trans' if any(op.startswith(x) for x in TRANS) else 'valu'
        i.dst = R[0]
        i.src = flat(R[1:])
        if op.startswith(('v_fmac', 'v_writelane', 'v_pk_fmac')) or i.dpp:
            i.src = i.src + R[0]
        if op.startswith('v_cndmask') and len(ops) == 3:
            i.src = i.src + ['vcc']
        if op.startswith(('v_add_co', 'v_addc_co', 'v_sub_co')):
            i.dst = R[0] + R[1]
            i.src = flat(R[2:])
    elif op.startswith('ds_read'):
        i.kind = 'lds'
        i.dst = R[0]
        i.src = flat(R[1:])
    elif op.startswith('ds_'):
        i.kind = 'lds'
        i.dst = []
        i.src = flat(R)
        if 'addtid' in op:
            i.src = i.src + ['m0']
    elif op.startswith(('buffer_load', 'global_load')):
        i.kind = 'vmem'
        if 'lds' in op or ' lds' in rest:
            i.dst = []
            i.src = flat(R) + ['m0']
        else:
            i.dst = R[0]
            i.src = flat(R[1:])
    elif op.startswith(('buffer_store', 'global_store')):
        i.kind = 'vmem'
        i.dst = []
        i.src = flat(R)
        i.wide_store = 'x4' in op or 'x3' in op
    elif op.startswith(('s_load', 's_memtime', 's_memrealtime', 's_buffer_load')):
        i.kind = 'smem'
        i.dst = R[0]
        i.src = flat(R[1:])
    elif op.startswith('s_'):
        i.kind = 'salu'
        if op.startswith(('s_cmp', 's_cbranch', 's_branch', 's_waitcnt', 's_nop', 's_barrier', 's_setprio', 's_endpgm', 's_sleep', 's_setpc')):
            i.dst = []
            i.src = flat(R)
        else:
            i.dst = R[0]
            i.src = flat(R[1:])
    else:
        raise ValueError(text)
    return i


class Asm:
    def __init__(self):
        self.lines = []
        self.hist = []
        self.lgkm = []
        self.smem = []
        self.vm = []
        self.nops = 0
        self.stats = {}
        self.now = None
        self.next_done = None
        self.ldone = {}

    def fork(self):
        o = Asm()
        o.hist = list(self.hist)
        o.lgkm = [list(x) for x in self.lgkm]
        o.smem = list(self.smem)
        o.vm = [list(x) for x in self.vm]
        return o

    def raw(self, s):
        self.lines.append(s)

    def label(self, s):
        self.lines.append(s + ':')

    def comment(self, s):
        self.lines.append('    ; ' + s)

    def _push(self, i, states=1):
        self.lines.append('    ' + i.text)
        self.hist.append((i, states))
        if len(self.hist) > 40:
            self.hist.pop(0)
        self.stats[i.kind] = self.stats.get(i.kind, 0) + 1

    def wait(self, vm=None, lgkm=None):
        parts = []
        if vm is not None:
            parts.append(f'vmcnt({vm})')
            self.vm = self.vm[len(self.vm) - vm:] if vm < len(self.vm) and vm > 0 else ([] if vm == 0 else self.vm)
        if lgkm is not None:
            parts.append(f'lgkmcnt({lgkm})')
            if lgkm == 0:
                self.lgkm, self.smem = [], []
            else:
                assert not self.smem, 'counted lgkmcnt with scalar loads outstanding'
                if lgkm < len(self.lgkm):
                    self.lgkm = self.lgkm[len(self.lgkm) - lgkm:]
        self._push(parse('s_waitcnt ' + ' '.join(parts)))

    def nop(self, n):
        while n > 0:
            k = min(n, 16)
            self._push(parse(f's_nop {k-1}'), k)
            self.nops += k
            n -= k

    def _need_states(self, i):
        need = 0
        dist = 0
        rs, ws = set(i.src), set(i.dst)
        for p, st in reversed(self.hist):
            req = 0
            pd = set(p.dst)
            pv = {r for r in pd if r[0] in 'va' and r != 'vcc'}
            ps = pd - pv
            if p.kind == 'mfma':
                big = 12 if p.passes == 8 else 8
                if i.kind == 'mfma':
                    if pd & set(i.srcAB):
                        req = max(req, big)
                    if pd & set(i.srcC):
                        if not (list(p.dst) == list(i.srcC) and p.passes == i.passes):
                            req = max(req, big - 2)
                    elif pd & ws:
                        req = max(req, big)
                elif i.kind in ('valu', 'trans', 'lds', 'vmem'):
                    if pd & (rs | ws):
                        req = max(req, big)
                    if i.kind in ('valu', 'trans') and set(p.srcC) & ws:
                        req = max(req, 7 if p.passes == 8 else 3)
            elif p.kind in ('valu', 'trans'):
                if i.kind == 'mfma' and pv & rs:
                    req = max(req, 2)
                if i.kind == 'mfma' and 'exec' in pd:
                    req = max(req, 4)
                if p.kind == 'trans' and i.kind == 'valu' and pv & rs:
                    req = max(req, 1)
                if p.kind == 'trans' and i.kind in ('lds', 'vmem') and pv & rs:
                    req = max(req, 1)
                if i.kind in ('valu', 'trans'):
                    if i.dpp and pv & rs:
                        req = max(req, 2)
                    if i.op.startswith(('v_readlane', 'v_readfirstlane')) and pv & rs:
                        req = max(req, 1)
                    if i.op.startswith('v_permlane') and pv & (rs | ws):
                        req = max(req, 2)
                    if ps & rs:
                        req = max(req, 4 if i.op.startswith(('v_readlane', 'v_writelane')) else 2)
                if i.kind == 'vmem' and ps & rs:
                    req = max(req, 5)
                if i.kind in ('salu', 'smem') and ps & rs:
                    req = max(req, 1)
            elif p.kind == 'salu':
                if 'm0' in pd and 'm0' in rs and i.kind in ('lds', 'vmem'):
                    req = max(req, 1)
            elif p.kind == 'vmem' and p.wide_store:
                if set(p.src) & ws and i.kind in ('valu', 'trans', 'mfma'):
                    req = max(req, 2)
                elif set(p.src) & ws:
                    req = max(req, 1)
            need = max(need, req - dist)
            dist += st
            if dist >= 20:
                break
        return need

    def __call__(self, text):
        for ln in text.strip().split('\n'):
            ln = ln.split(';')[0].strip()
            if ln:
                self.one(ln)

    def one(self, text):
        i = parse(text)
        touched = set(i.src) | set(i.dst)
        wv = wl = None
        for n, d in enumerate(self.vm):
            if touched & set(d):
                wv = len(self.vm) - 1 - n
        for n, d in enumerate(self.lgkm):
            if touched & set(d):
                wl = len(self.lgkm) - 1 - n
        if touched & set(self.smem):
            wl = 0
        if wl is not None and self.smem:
            wl = 0
        if wl is not None and wl > 0 and self.now is not None:
            n = len(self.lgkm)
            while wl > 0 and self.ldone.get(id(self.lgkm[n - wl]), 1 << 60) <= self.now:
                wl -= 1
        if wl is not None:
            wl = min(wl, 15)
        if wv is not None or wl is not None:
            self.wait(vm=wv, lgkm=wl)
        n = self._need_states(i)
        if n > 0:
            self.nop(n)
        self._push(i)
        if i.kind == 'lds':
            e = list(i.dst)
            self.lgkm.append(e)
            self.keep = getattr(self, 'keep', [])
            self.keep.append(e)
            self.last_entry = e
            if self.next_done is not None:
                self.ldone[id(e)] = self.next_done
        elif i.kind == 'vmem':
            self.vm.append(list(i.dst))
        elif i.kind == 'smem':
            self.smem += list(i.dst) or ['?']

    def barrier_for(self, entries):
        ids = {id(e) for e in entries}
        last = [n for n, d in enumerate(self.lgkm) if id(d) in ids]
        if last:
            self.wait(lgkm=min(15, len(self.lgkm) - 1 - max(last)))
        self.one('s_barrier')

    def barrier(self):
        if self.lgkm_has_write():
            self.wait(lgkm=self.lgkm_after_last_write())
        self.one('s_barrier')

    def lgkm_has_write(self):
        return any(len(d) == 0 for d in self.lgkm)

    def lgkm_after_last_write(self):
        last = max(n for n, d in enumerate(self.lgkm) if len(d) == 0)
        k = len(self.lgkm) - 1 - last
        return 0 if self.smem else min(k, 15)

    def text(self):
        return '\n'.join(self.lines) + '\n'


def vr(a, n=1):
    return f'v{a}' if n == 1 else f'v[{a}:{a+n-1}]'


def sr(a, n=1):
    return f's{a}' if n == 1 else f's[{a}:{a+n-1}]'


LDS_COST = {'ds_write_addtid_b32': 2, 'ds_write_b16': 4, 'ds_write_b16_d16_hi': 4, 'ds_write_b32': 4, 'ds_write_b64': 6,
            'ds_write2_b32': 6, 'ds_write_b128': 13, 'ds_read_b32': 2, 'ds_read_b64': 2, 'ds_read2_b32': 4,
            'ds_read_b128': 4, 'ds_read_b64_tr_b16': 2}


class Item:
    def __init__(self, text=None, mr=(), mw=(), fn=None, src=(), dst=(), cost=4, prio=None, delay=0, notbefore=0):
        self.text, self.mr, self.mw, self.fn, self.cost, self.prio = text, set(mr), set(mw), fn, cost, prio
        self.delay = delay
        self.notbefore = notbefore
        if text is not None:
            self.ins = parse(text)
            self.src, self.dst, self.kind = set(self.ins.src), set(self.ins.dst), self.ins.kind
        else:
            self.ins = None
            self.src, self.dst, self.kind = set(src), set(dst), 'block'


def hazard_states(p, i):
    if p.ins is None or i.ins is None:
        return 0
    if p.kind == 'mfma':
        big = 12 if p.ins.passes == 8 else 8
        if i.kind == 'mfma':
            if p.dst & set(i.ins.srcAB):
                return big
            if p.dst & set(i.ins.srcC):
                return 0 if list(p.ins.dst) == list(i.ins.srcC) else big - 2
            if p.dst & i.dst:
                return big
            return 0
        if p.dst & (i.src | i.dst):
            return big
        return 0
    if p.kind in ('valu', 'trans'):
        pv = {r for r in p.dst if r[0] == 'v' and r != 'vcc'}
        ps = p.dst - pv
        if i.kind == 'mfma' and pv & i.src:
            return 2
        if i.kind in ('valu', 'trans'):
            if ps & i.src:
                return 4 if i.ins.op.startswith(('v_readlane', 'v_writelane')) else 2
            if i.ins.dpp and pv & i.src:
                return 2
            if i.ins.op.startswith(('v_readlane', 'v_readfirstlane')) and pv & i.src:
                return 1
            if p.kind == 'trans' and i.kind == 'valu' and pv & i.src:
                return 1
    return 0


def build_dag(items, inorder_mfma=False):
    n = len(items)
    preds = [dict() for _ in range(n)]
    lastw, readers = {}, {}
    mlastw, mreaders = {}, {}
    lastm = None
    for k, it in enumerate(items):
        for r in it.src:
            if r in lastw:
                preds[k][lastw[r]] = 'raw'
        for r in it.dst:
            if r in lastw:
                preds[k].setdefault(lastw[r], 'waw')
            for q in readers.get(r, ()):
                if q != k:
                    preds[k].setdefault(q, 'ord')
        for m in it.mr:
            for q in mlastw.get(m, ()):
                preds[k].setdefault(q, 'mem')
        for m in it.mw:
            for q in mreaders.get(m, ()):
                if q != k:
                    preds[k].setdefault(q, 'ord')
            for q in mlastw.get(m, ()):
                preds[k].setdefault(q, 'ord')
        if inorder_mfma and it.kind == 'mfma':
            if lastm is not None:
                preds[k].setdefault(lastm, 'ord')
            lastm = k
        for r in it.src:
            readers.setdefault(r, []).append(k)
        for r in it.dst:
            lastw[r] = k
            readers[r] = []
        for m in it.mr:
            mreaders.setdefault(m, []).append(k)
        for m in it.mw:
            mlastw.setdefault(m, []).append(k)
    return preds


def schedule(a, items, share=2, nw=8, lds_lat=110, verbose=False, t_lds0=0, ladder=0, merge=40, ahead=16, inorder_mfma=False, group=4, drop=(), urgent_nops=4, lskip=0, ahead_v=0, hold=1, anneal=None):
    n = len(items)
    preds = build_dag(items, inorder_mfma)
    done = [None] * n
    issued = [None] * n
    pos = [None] * n
    t = 0
    free = {'valu': 0, 'mfma': 0, 'lds': t_lds0}
    order = []
    times = []
    left = set(range(n))

    ingroup = [0]
    vec_ok = [0]

    def ready_time(k):
        it = items[k]
        rt = it.notbefore
        short = 0
        for p, kind in preds[k].items():
            if issued[p] is None:
                return None, 0
            pi = items[p]
            if kind in ('raw', 'waw'):
                if pi.kind == 'mfma' and it.kind == 'mfma' and it.ins.srcC == pi.ins.dst and not (set(it.ins.srcAB) & pi.dst):
                    rt = max(rt, issued[p])
                else:
                    rt = max(rt, done[p])
                short = max(short, hazard_states(pi, it) - (len(order) - pos[p] - 1))
            elif kind == 'mem' and it.kind == 'block':
                rt = max(rt, done[p] + it.delay)
            else:
                rt = max(rt, issued[p])
        if it.kind == 'mfma':
            rt = max(rt, free['mfma'] - 4)
        elif it.kind in ('valu', 'trans'):
            rt = max(rt, free['valu'] - 4)
        elif it.kind == 'lds' and not (0 < ingroup[0] < group):
            prev = items[order[-1]].kind if order else None
            if prev in ('valu', 'trans'):
                rt = max(rt, free['lds'] - ahead_v, vec_ok[0] if hold else 0)
            else:
                rt = max(rt, free['lds'] - ahead)
        return rt, short
    rank = {'mfma': 0, 'block': 1, 'lds': 2, 'vmem': 2, 'valu': 3, 'trans': 3, 'salu': 4, 'smem': 3}
    while left:
        cand = []
        for k in left:
            rt, short = ready_time(k)
            if rt is not None:
                if items[k].prio == 0 and short > 0 and short <= urgent_nops:
                    short = 0
                cand.append((rt, short, k))
        key = lambda k: (-1 if (items[k].kind == 'lds' and 0 < ingroup[0] < group) else rank[items[k].kind],
                         items[k].prio if items[k].prio is not None else k, k)
        now = [key(k) for rt, short, k in cand if rt <= t and short <= 0]
        if not now and ingroup[0]:
            ingroup[0] = 0
            continue
        if not now:
            clean = [rt for rt, short, k in cand if short <= 0]
            dirty = [(max(rt, t) + 4 * short, key(k)) for rt, short, k in cand if short > 0]
            if clean and (not dirty or min(clean) <= min(dirty)[0] + 24):
                t = min(clean)
                continue
            t, kk = min(dirty)
            now = [kk]
        k = min(now)[2]
        it = items[k]
        if it.kind == 'lds':
            t = max(t, vec_ok[0])
            ingroup[0] = ingroup[0] + 1 if ingroup[0] < group else 1
        else:
            ingroup[0] = 0
        issued[k] = t
        pos[k] = len(order)
        times.append(t)
        if it.kind == 'mfma':
            c = 4 * it.ins.passes
            start = max(t, free['mfma'])
            free['mfma'] = start + c * share
            free['valu'] = max(free['valu'], t) + 8 * share
            done[k] = start + c + 24
            t += 8
        elif it.kind in ('valu', 'trans'):
            c = 8 if it.kind == 'trans' else 4
            free['valu'] = max(free['valu'], t) + c * share
            done[k] = t + c + 4
            vec_ok[0] = t + c + 8
            t += c
        elif it.kind == 'lds':
            c = LDS_COST[it.ins.op]
            start = max(t, free['lds'])
            free['lds'] = start + c * nw
            done[k] = start + c * nw + lds_lat - 40
            nvec = max(1, len([r for r in it.ins.src if r[0] == 'v']))
            t += 4 * nvec
        else:
            done[k] = t + it.cost
            t += it.cost
        order.append(k)
        left.remove(k)
    if verbose:
        bars = [(times[j], sum(items[q].kind == 'mfma' for q in order[:j])) for j, k in enumerate(order) if 'bar' in items[k].mw]
        print('  schedule: model time', t, 'mfma free', free['mfma'], 'lds free', free['lds'], 'barriers (t, mfma#)', bars)
    prio_at = {}
    if ladder:
        seg = []
        segs = []
        for j, k in enumerate(order):
            if items[k].kind == 'mfma':
                seg.append(j)
            if 'bar' in items[k].mw:
                segs.append(seg)
                seg = []
        for seg in segs[lskip:]:
            if not seg:
                continue
            w = [items[order[j]].ins.passes for j in seg]
            tot, run, lvl = sum(w), 0, ladder
            for j, x in zip(seg, w):
                want = ladder - 1 - (run * ladder) // tot
                if want != lvl:
                    prio_at[j] = want
                    lvl = want
                run += x
    if anneal:
        import subprocess, os, hashlib
        items = list(items)
        o2 = []
        for j, k in enumerate(order):
            if j in prio_at:
                items.append(Item(f's_setprio {prio_at[j]}'))
                preds.append({})
                o2.append(len(items) - 1)
            o2.append(k)
        lines = [str(len(items))]
        for k, it in enumerate(items):
            op = it.ins.op if it.ins else ''
            if it.kind == 'block':
                d = '7 0 0 0' if 'bar' in it.mw else '5 0 0 0'
            elif it.kind == 'mfma':
                d = f'3 {4*it.ins.passes} 0 0'
            elif it.kind == 'trans':
                d = '1 0 0 0'
            elif it.kind == 'valu':
                d = '2 0 0 0' if op.startswith('v_pk_') and op.endswith('f32') else '0 0 0 0'
            elif it.kind == 'lds':
                nvec = max(1, len([r for r in it.ins.src if r[0] == 'v']))
                d = f'4 {LDS_COST[op]} {nvec} {(2 if "b128" in op else 1) if it.ins.dst else 0}'
            elif it.kind == 'vmem':
                d = f'6 {int("store" in op)} 0 0'
            elif op == 's_setprio':
                d = f'8 {it.text.split()[1]} 0 0'
            else:
                d = '5 0 0 0'
            e = []
            for p_, kind in preds[k].items():
                pi = items[p_]
                w = int(pi.kind == 'lds' and ((bool(pi.ins.dst) and kind in ('raw', 'waw')) or (it.kind == 'block' and kind == 'mem')))
                st = hazard_states(pi, it) if kind in ('raw', 'waw') else 0
                if pi.kind == 'salu' and 'm0' in pi.dst and it.kind == 'lds':
                    st = 1
                e.append(f'{p_} {w} {st}')
            lines.append(f'{d} {getattr(it, "tag", 0)} {it.notbefore} {len(e)} ' + ' '.join(e))
        lines.append(' '.join(map(str, o2)))
        txt = '\n'.join(lines) + '\n'
        key = hashlib.md5((txt + ' '.join(anneal)).encode()).hexdigest()[:12]
        os.makedirs('cache', exist_ok=True)
        fo = f'cache/{key}.ord'
        if not os.path.exists(fo):
            fi = f'cache/{key}.dag'
            open(fi, 'w').write(txt)
            r = subprocess.run(['sim', fi] + list(anneal), capture_output=True, text=True)
            er = r.stderr.strip().split('\n')
            open(fo, 'w').write(er[0] + ' -> ' + er[-1] + '\n' + r.stdout)
        res = open(fo).read().strip().split('\n')
        print('  anneal:', res[0])
        seen = set()
        for ln in res[1:]:
            k, v = map(int, ln.split())
            it = items[k]
            assert all(p_ in seen for p_ in preds[k])
            seen.add(k)
            if it.fn:
                it.fn([items[p_].entry for p_, kind in preds[k].items() if kind == 'mem' and items[p_].kind == 'lds'])
            elif it.ins.op == 's_setprio':
                a.one(f's_setprio {v}')
            else:
                a.one(it.text)
                if it.kind == 'lds':
                    it.entry = a.last_entry
        assert len(seen) == len(items)
        return t
    for j, k in enumerate(order):
        it = items[k]
        a.now = times[j] - merge
        if j in prio_at:
            a.one(f's_setprio {prio_at[j]}')
        if it.fn:
            a.next_done = None
            it.fn(None)
        elif it.kind in drop or (it.kind == 'lds' and (('ldsr' in drop and it.ins.dst) or ('ldsw' in drop and not it.ins.dst))):
            pass
        else:
            a.next_done = done[k]
            a.one(it.text)
    a.now = a.next_done = None
    return t


def gapsched(a, items, dl=5, dm=3, dw=4, nmax=2, v2=1, slack=0, window=3, ladder=4, big=(2, 6), verbose=False, lskip=0, mixw=0.0, dlbig=2):
    n = len(items)
    preds = build_dag(items)
    succs = [[] for _ in range(n)]
    for k in range(n):
        for p in preds[k]:
            succs[p].append(k)
    cls = ['M' if it.kind == 'mfma' else 'L' if it.kind in ('lds', 'vmem') else 'V' if it.kind in ('valu', 'trans') else 'S' for it in items]
    slots = [getattr(it, 'slots', None) or (max(1, len([r for r in it.ins.src if r[0] == 'v'])) if cls[k] == 'L' else 0)
             for k, it in enumerate(items)]

    def dist(p, k):
        kind, pi, it = preds[k][p], items[p], items[k]
        data = kind in ('raw', 'waw')
        if cls[p] == 'L' and pi.ins is not None and pi.ins.dst and data:
            return dlbig if cls[k] == 'M' and it.ins.passes == 8 else dl
        if cls[p] == 'L' and kind == 'mem' and it.kind == 'block':
            return dw if it.delay else 1
        if pi.kind == 'block' and it.kind == 'block':
            return getattr(it, 'after', 0)
        if cls[p] == 'M':
            if data and not (cls[k] == 'M' and it.ins.srcC == pi.ins.dst and not (set(it.ins.srcAB) & pi.dst)):
                return dm
            return 1 if cls[k] == 'M' else 0
        if cls[k] == 'M':
            return 1
        if cls[p] == 'V' and cls[k] == 'L':
            return 1
        return 0
    mlist = [k for k in range(n) if cls[k] == 'M']
    mpos = {k: j for j, k in enumerate(mlist)}
    dead = [None] * n
    usedL, usedV = {}, {}
    for k in range(n - 1, -1, -1):
        if cls[k] == 'M':
            dead[k] = mpos[k]
    order_b = []
    cnt = [len([c for c in succs[k] if cls[c] != 'M']) for k in range(n)]
    import heapq
    heap = []

    def lim(k):
        d = min([dead[c] - dist(k, c) for c in succs[k]] or [len(mlist) + 8])
        if items[k].prio == 0:
            e = getattr(items[k], 'want', None)
            if e is not None:
                d = min(d, mpos[e[0]] + e[1])
        return d
    for k in range(n):
        if cls[k] != 'M' and cnt[k] == 0:
            heapq.heappush(heap, (-lim(k), -k))
    while heap:
        d, k = heapq.heappop(heap)
        d, k = -d, -k
        cap = lambda g: big if 0 <= g < len(mlist) and items[mlist[g]].ins.passes == 8 else (1, 2)
        if cls[k] == 'L':
            need = slots[k]
            while need:
                if usedL.get(d, 0) < cap(d)[0]:
                    usedL[d] = usedL.get(d, 0) + 1
                    need -= 1
                else:
                    d -= 1
        elif cls[k] == 'V':
            while usedV.get(d, 0) >= cap(d)[1]:
                d -= 1
            usedV[d] = usedV.get(d, 0) + 1
        dead[k] = d
        for p in preds[k]:
            if cls[p] != 'M':
                cnt[p] -= 1
                if cnt[p] == 0:
                    heapq.heappush(heap, (-lim(p), -p))
    raw = [None] * n
    for k in range(n - 1, -1, -1):
        if cls[k] == 'M':
            raw[k] = mpos[k]
        else:
            raw[k] = min([raw[c] - dist(k, c) - (0.3 if cls[c] == cls[k] else 0) for c in succs[k]] or [len(mlist) + 8])
            e = getattr(items[k], 'want', None)
            if e is not None:
                raw[k] = min(raw[k], mpos[e[0]] + e[1])
    key = [mixw * dead[k] + (1 - mixw) * raw[k] for k in range(n)]
    gap_of = [None] * n
    out = []
    g = 0
    mdone = 0
    left = set(range(n))
    mleft = list(mlist)
    cost = 0
    debt = 0
    log = []

    def ready(k):
        if items[k].notbefore > 2 * cost:
            return False
        return all(gap_of[p] is not None and gap_of[p] + dist(p, k) <= g for p in preds[k])

    def take(k):
        gap_of[k] = g
        out.append(k)
        left.discard(k)

    def scalars():
        again = True
        while again:
            again = False
            for k in sorted(left):
                if cls[k] == 'S' and ready(k):
                    take(k)
                    again = True
    while left:
        m = next((k for k in mleft[:window] if ready(k)), None)
        if m is not None:
            take(m)
            mleft.remove(m)
            mdone += 1
        capL, capV = (big if items[m].ins.passes == 8 else (1, 2)) if m is not None else (2, 4)
        nl = nv = 0
        scalars()
        capL -= debt
        debt = 0
        while True:
            c = sorted((key[k], k) for k in left if cls[k] == 'L' and ready(k))
            if not c:
                break
            late = min(dead[k] for _, k in c) + slack < mdone - 1
            if nl < capL or (late and nl < capL + nmax - 1):
                take(c[0][1])
                nl += slots[c[0][1]]
                scalars()
            else:
                break
        if m is not None and nl > capL + nmax - 1:
            debt = min(1, nl - (capL + nmax - 1))
        over = m is not None and nl > capL
        while True:
            c = sorted((key[k], k) for k in left if cls[k] == 'V' and ready(k))
            if not c:
                break
            late = min(dead[k] for _, k in c) + slack < mdone - 1
            if nv < (v2 if over else capV) or (late and nv < capV):
                take(c[0][1])
                nv += 1
                scalars()
            else:
                break
        if m is not None:
            base = 4 * items[m].ins.passes
            cost += max(base, 4 + 8 * nl + (3 * nv if over else 0), 8 + 4 * nv)
        else:
            cost += max(8 * nl, 4 * nv, 8)
        log.append(('m' if m is not None else '-') + str(nl) + str(nv))
        g += 1
    if verbose:
        bars = [sum(cls[q] == 'M' for q in out[:j]) for j, k in enumerate(out) if 'bar' in items[k].mw]
        print('  gapsched: cost', 2 * cost, 'bubbles', sum(x[0] == '-' for x in log), 'barriers at mfma#', bars)
        if verbose > 1:
            print('   ', ' '.join(log))
    prio_at = {}
    if ladder:
        seg, segs = [], []
        for j, k in enumerate(out):
            if cls[k] == 'M':
                seg.append(j)
            if 'bar' in items[k].mw:
                segs.append(seg)
                seg = []
        for seg in segs[lskip:]:
            w = [items[out[j]].ins.passes for j in seg]
            tot, run, lvl = sum(w), 0, ladder
            for j, x in zip(seg, w):
                want = ladder - 1 - (run * ladder) // tot
                if want != lvl:
                    prio_at[j] = want
                    lvl = want
                run += x
    for j, k in enumerate(out):
        it = items[k]
        a.now = gap_of[k]
        if it.fn:
            a.next_done = None
            it.fn([items[p].entry for p, kind in preds[k].items() if kind == 'mem' and items[p].kind == 'lds'])
        else:
            a.next_done = gap_of[k] + dl
            a.one(it.text)
            if it.kind == 'lds':
                it.entry = a.last_entry
        if j in prio_at:
            a.one(f's_setprio {prio_at[j]}')
    a.now = a.next_done = None
    return 2 * cost
```

```python
import sys
from asmlib import Asm, vr, sr, Item, schedule, gapsched

KNAME = 'standalone__ssm_conv_s4__prompt_kernel'

RS = 16320
ROW = 272
NROWS = 54
UT = 8 * RS
US = 4160
LDS_BYTES = UT + 8 * US
BAND = UT + 1088
STG = 18 * ROW
T2 = NROWS * ROW
T2B = 376
T3 = T2 + 820
assert T3 + 316 <= RS and LDS_BYTES <= 163840 and T2 % 16 == 0

XROW = {0: 15, 1: 5, 2: 19, 3: 20, 4: 3, 5: 4, 6: 9, 7: 8, 8: 21, 256: 12, 258: 14, 260: 11, 262: 7, 264: 2, 516: 13, 520: 18,
        772: 10, 776: 6, 1032: 1, 1288: 17, 1544: 0, 1800: 16}
XV = [(v, 256 + [0, 0, 2, 4, 4, 4, 6, 8, 8][v]) for v in range(9)] + [(516, 772), (520, 776), (1032, 1544), (1288, 1800)]
XOF = [XV[min(4 * (r >> 3) + (r & 3), 12)][(r >> 2) & 1] for r in range(32)]
ALPHA = {7: 0, 8: 1, 1: 2, 2: 3, 3: 4, 4: 5, 5: 6, 6: 7}


def mu(g, e):
    return 16 * (g >> 1) + 4 * (g & 1) + 2 * (e >> 2) + 8 * (1 - ((e >> 1) & 1)) + (e & 1)


def t1_dword(copy, r, n):
    return 68 * (1 + ALPHA[r]) + n if copy == 0 else 68 * (9 + ALPHA[r]) + 1 + n


S_U, S_OUT = 24, 28
S_WAVE, S_ROLE, S_CG, S_BASE, S_MA, S_UB = 32, 33, 34, 35, 36, 37
S_T = 38
S_SELLO, S_SELHI, S_MB, S_HIMASK = 48, 49, 50, 51
S_L0, S_L032 = 52, 54
S_TILE = 56
S_KN = 57
S_QD = 58
S_SC, S_INV = 54, 55
S_UFULL = 96
S_STAMP = 60

(V_LANE, V_UF, V_K1A, V_K1B, V_K2, V_K3, V_SW, V_SR, V_OUT, V_ZERO, V_SR2,
 V_UL2, V_UL3, V_USW, V_BR,
 V_LP, V_YR, V_XR, V_DSK,
 V_EW, V_ESEL, V_T3W, V_FREE) = range(1, 24)
V_US = 24
V_BAND = 28
V_ACC = 56
V_KD = 76
V_K2F = 144
V_K3F = 168
V_PK = 184
V_D = 208
V_G = 224
V_TT = 248
V_URAW = [56, 60, 240, 244]
V_PAR = 72
V_CC = 80
V_W = 86
V_FR = 144
V_TMP = 224


def edge_list():
    Z, A_, B_, K0 = 0x0c0c, 0x0504, 0x0302, 0x0100
    tapsel = lambda t: K0 if t == 0 else A_ if 512 <= t <= 514 else B_ if 515 <= t <= 517 else Z
    need = {}
    for s_ in range(17):
        for l in range(64):
            f, g = l & 15, l >> 4
            for beta in range(2):
                tau = f + 5 + 32 * s_ - 16 * (g >> 1) - 4 * (g & 1) - 2 * beta
                n = (tau - 1) >> 3
                r = tau - 8 * n
                cp = (n - 1) & 1
                for nn in (n - 1, n):
                    if not 0 <= nn < 64:
                        t = 8 * nn + r
                        sel = tapsel(t) | (tapsel(t - 1) << 16)
                        dw = t1_dword(cp, r, nn)
                        assert need.setdefault(dw, sel) == sel
    data = {t1_dword(cp, r, n) for cp in range(2) for r in ALPHA for n in range(64)}
    assert not data & set(need)
    e = sorted((dw, sel) for dw, sel in need.items() if not 64 <= dw < 68)
    assert len(e) <= 64
    return e + [e[-1]] * (64 - len(e))


EDGE = edge_list()


STM = [0]


def lane_consts(l):
    c, h, f, g = l & 31, l >> 5, l & 15, l >> 4

    def k1(beta):
        tau = f + 5 - 16 * (g >> 1) - 4 * (g & 1) - 2 * beta
        n = (tau - 1) >> 3
        return 4 * t1_dword((n - 1) & 1, tau - 8 * n, n - 1)
    a2 = 8 * (f - 4 * g + 12)
    d = (l & 15) >> 1
    pos = 2 * (d & 3) + (1 - (d >> 2))
    return {
        V_YR: ROW * c + 16 * h,
        V_XR: ROW * (32 + XROW[XOF[c]]) + 16 * h,
        V_K1A: k1(0),
        V_K1B: k1(1),
        V_K2: T2 + (a2 if a2 % 16 == 0 else a2 + T2B),
        V_K3: T3 + 4 * (f - 4 * g + 12),
        V_EW: 4 * EDGE[l][0],
        V_T3W: T3 + 60 + 128 * h + 2 * c,
        V_SW: 32 * (4 * (g & 1) + (f >> 2)) + 16 * ((f >> 1) & 1) + (4 * (g >> 1) if STM[0] else 0x8000 * (g >> 1)) + (f & 1),
        V_UF: 32 * f + 16 * g,
        V_USW: (4128 if l < 16 else 0) + 4 * pos + 2 * (l & 1),
        V_SR: (f >> 2) * RS + STG + 8 * (4 * (g if STM[0] else g & 1) + (f & 3)),
    }


LC_ORDER = [V_YR, V_XR, V_USW, V_UF, V_K1A, V_K1B, V_K2, V_K3, V_EW, V_T3W, V_SW, V_SR]
LC_BASE = {V_UF: S_UB, V_USW: S_UB, V_SR: S_QD, V_SW: S_T + 5}


def tables():
    words = []
    for (lo, hi, one) in [(6, 10, 0x3f80), (11, 13, 0x3f80), (14, 18, 0x3f80), (19, 21, 0x3f80), (5, 11, 0x3f80), (12, 20, 0x3f80),
                          (5, 5, 1)]:
        for l in range(64):
            f, g = l & 15, l >> 4
            e = [one if lo <= f + 21 - mu(g, k) <= hi else 0 for k in range(8)]
            words += [e[2 * q] | (e[2 * q + 1] << 16) for q in range(4)]
    for half in range(2):
        for l in range(64):
            lc = lane_consts(l)
            v = [lc[r] for r in LC_ORDER] + [0, 0, EDGE[l][1] & 0xffff, EDGE[l][1] >> 16]
            assert all(0 <= x < 65536 for x in v) and len(v) == 16
            for q in range(4):
                k = 8 * half + 2 * q
                words.append(v[k] | (v[k + 1] << 16))
    s = ''
    for k in range(0, len(words), 8):
        s += '.long ' + ', '.join(f'0x{w:08x}' for w in words[k:k + 8]) + '\n'
    return s


def ssize(t):
    import re
    if t.split()[0].startswith(('s_movk', 's_nop', 's_cbranch', 's_setprio')):
        return 4
    for o in t.split(None, 1)[1].split(','):
        o = o.strip()
        if re.fullmatch(r'-?(0x[0-9a-f]+|\d+)', o) and not -16 <= int(o, 0) <= 64:
            return 8
    return 4


def gen(opt):
    a = Asm()
    stamp_n = [0]

    def stamp(a, late=False, always=False):
        if opt.get('stamps') and (always or ((opt.get('stamps') == 2) == late and opt.get('stamps') < 4) or opt.get('stamps') == 3):
            a.raw(f'    {"s_memrealtime" if opt.get("rt") else "s_memtime"} {sr(S_STAMP + 2*stamp_n[0], 2)}')
            stamp_n[0] += 1

    def ampstamp(k):
        if opt.get('stamps') == 5:
            stamp(a, always=True)
        if opt.get('amp') and opt.get('ampat', 0) == k:
            a.raw(f'    s_memrealtime s[100:101]')

    if opt.get('stamps') or opt.get('spin') or opt.get('amp'):
        a.raw(f'    s_memrealtime {sr(90, 2)}')
    stamp(a, always=True)
    a(f's_load_dwordx16 s[4:19], s[0:1], 0')
    a(f's_load_dwordx4 s[20:23], s[0:1], 64')
    if opt.get('stamps'):
        a(f's_load_dwordx2 s[94:95], s[0:1], 88')
    a('s_cmp_ge_u32 s2, 256')
    a('s_cbranch_scc1 L_end')
    TB = V_TMP
    X0, X1, X2, X3 = V_TMP + 8, V_TMP + 9, V_TMP + 10, V_TMP + 11
    UL0, UL1 = V_TMP + 12, V_TMP + 13
    a(f's_getpc_b64 {sr(S_T, 2)}')
    a.label('L_pc')
    a(f"""
    v_readfirstlane_b32 s{S_WAVE}, v0
    v_lshlrev_b32 v{X0}, 4, v0
    s_add_u32 s{S_T+2}, s{S_T}, L_tbl-L_pc
    s_addc_u32 s{S_T+3}, s{S_T+1}, 0
    s_mul_i32 s{S_UB}, s{S_WAVE}, {US//64}
    s_add_u32 m0, s{S_UB}, {BAND}
    s_cmp_lg_u32 s{S_WAVE}, {7*64}
    s_cbranch_scc1 L_notb
    """)
    a.raw(f'    global_load_lds_dwordx4 v{X0}, {sr(S_T+2, 2)} offset:1024')
    if opt.get('prefetch', 1):
        npf = opt.get('npf', 4)
        a(f's_lshr_b32 s{S_T+4}, s2, 3')
        a(f'v_and_b32 v{X1}, {npf-1}, v0')
        a(f'v_mad_u32_u24 v{X1}, v{X1}, {128//npf}, s{S_T+4}')
        a(f'v_and_b32 v{X1}, 0x7f, v{X1}')
        a(f'v_lshlrev_b32 v{X1}, 7, v{X1}')
        a.raw(f'    global_load_dword v{V_TT}, v{X1}, {sr(S_T, 2)}')
    a.label('L_notb')
    a(f'global_load_lds_dwordx4 v{X0}, {sr(S_T+2, 2)}')
    a(f"""
    v_and_b32 v{V_LANE}, 63, v0
    s_lshr_b32 s{S_WAVE}, s{S_WAVE}, 6
    s_and_b32 s{S_T+2}, s2, 7
    s_bfe_u32 s{S_T+4}, s2, 0x20003
    s_lshr_b32 s{S_T+5}, s2, 6
    s_lshl2_add_u32 s{S_T+4}, s{S_T+5}, s{S_T+4}
    s_lshl4_add_u32 s{S_T+2}, s{S_T+2}, s{S_T+4}
    s_lshl_b32 s{S_CG}, s{S_T+2}, 4
    s_lshl_b32 s{S_T+5}, s{S_T+2}, 11
    s_lshl1_add_u32 s{S_T+2}, s{S_WAVE}, s{S_CG}
    v_lshl_add_u32 v{X1}, v0, 2, s{S_T+5}
    v_mov_b32 v{X2}, s{S_T+2}
    s_bfe_u32 s{S_ROLE}, s2, 0x10005
    v_lshl_add_u32 v{X3}, v{V_LANE}, 11, v{X2}
    v_add_u32 v{X3}, {2043*2048}, v{X3}
    v_and_b32 v{V_LP}, 1, v0
    v_xor_b32 v{V_LP}, 1, v{V_LP}
    v_bfe_u32 v{X0}, v0, 1, 2
    v_lshl_add_u32 v{V_LP}, v{V_LP}, 2, v{X0}
    v_and_or_b32 v{V_LP}, v0, 56, v{V_LP}
    s_add_u32 s{S_T+8}, s{S_T+4}, s{S_WAVE}
    s_and_b32 s{S_T+8}, s{S_T+8}, 7
    s_lshl_b32 s{S_T+2}, s{S_T+8}, 7
    s_add_u32 s{S_T+3}, s{S_T+2}, s{S_ROLE}
    s_sub_u32 s{S_T+2}, s{S_T+2}, s{S_ROLE}
    s_sub_u32 s{S_T+3}, s{S_T+3}, 5
    s_sub_u32 s{S_T+2}, s{S_T+2}, 4
    s_lshl_b32 s{S_T+3}, s{S_T+3}, 11
    s_lshl_b32 s{S_T+2}, s{S_T+2}, 11
    v_lshl_add_u32 v{UL0}, v{V_LP}, 12, s{S_T+3}
    v_lshl_add_u32 v{UL1}, v{V_LP}, 12, s{S_T+2}
    s_mov_b32 s{S_U+3}, 0x00020000
    s_mov_b32 s{S_OUT+3}, 0x00020000
    s_mov_b32 s{S_OUT+2}, 4194304
    s_mov_b32 s{S_SELLO}, 0x01000504
    s_cmp_eq_u32 s{S_ROLE}, 0
    s_cselect_b32 s{S_U+2}, {1280*2048}, s{S_OUT+2}
    s_cselect_b32 s{S_SELLO}, 0x05040100, s{S_SELLO}
    s_cselect_b32 s{S_T+2}, 4, 0
    v_add_u32 v{V_UL2}, 0x200000, v{UL0}
    v_add_u32 v{V_UL3}, 0x200000, v{UL1}
    s_add_u32 s{S_MA}, s{S_T+8}, s{S_T+2}
    s_add_u32 s{S_MB}, s{S_MA}, 8
    s_and_b32 s{S_MB}, s{S_MB}, 15
    s_lshl_b32 s{S_MA}, s{S_MA}, 8
    s_lshl_b32 s{S_MB}, s{S_MB}, 8
    """)
    ampstamp(10)
    a.wait(lgkm=0)
    ampstamp(5)
    a(f'global_load_ushort v{V_PAR+6}, v{X2}, s[18:19]')
    for k in range(6):
        a(f'global_load_dword v{V_PAR+k}, v{X1}, s[{6+2*k}:{7+2*k}]')
        if k == 1 and opt.get('split', 1):
            a('s_barrier')
    a(f'global_load_ushort v{V_PAR+7}, v{X2}, s[20:21]')
    a(f"""
    s_mov_b64 {sr(S_U, 2)}, s[4:5]
    s_mov_b64 {sr(S_OUT, 2)}, s[22:23]
    buffer_load_ushort v{V_US}, v{X3}, {sr(S_U, 4)}, 0 offen
    """)
    stamp(a)

    def uload(k):
        if opt.get('nou', 0) > 3 - k:
            return
        a(f'buffer_load_dwordx4 {vr(V_URAW[k], 4)}, v{[UL0, UL1, V_UL2, V_UL3][k]}, {sr(S_U, 4)}, s{S_CG} offen')
    ampstamp(13)

    def pads():
        a(f"""
        s_mov_b64 exec, 0
        s_cmp_eq_u32 s{S_WAVE}, 0
        s_cbranch_scc1 L_main1
        s_lshl1_add_u32 s{S_T+2}, s{S_WAVE}, s{S_ROLE}
        s_cmp_eq_u32 s{S_T+2}, 2
        s_cbranch_scc1 L_role0
        s_cmp_eq_u32 s{S_T+2}, 3
        s_cbranch_scc1 L_role1
        """)
        a.label('L_back0')
        a.label('L_back1')
        a('s_mov_b64 exec, -1')
    if opt.get('pads', 2) == 3:
        pads()
    a('s_barrier')
    uload(0); uload(1)
    ampstamp(6)
    a(f"""
    s_add_u32 s{S_UB}, s{S_UB}, {UT}
    s_mov_b32 m0, s{S_UB}
    v_mov_b32 v{V_ZERO}, 0
    s_mul_i32 s{S_BASE}, s{S_WAVE}, {RS}
    v_mov_b32 v{X0}, 0x3c00
    v_lshlrev_b32 v{V_BR}, 4, v{V_LANE}
    v_add_u32 v{V_BR}, {BAND}, v{V_BR}
    ds_write_addtid_b32 v{V_ZERO} offset:{32+512}
    ds_write_addtid_b32 v{V_ZERO} offset:{32+768}
    s_mov_b32 m0, s{S_BASE}
    s_mov_b64 {sr(S_L0, 2)}, 1
    ds_write_addtid_b32 v{V_ZERO} offset:16
    ds_write_addtid_b32 v{X0} offset:0
    ds_write_addtid_b32 v{V_ZERO} offset:{T2}
    ds_write_addtid_b32 v{V_ZERO} offset:{T2+256}
    ds_write_addtid_b32 v{V_ZERO} offset:{T2+640}
    s_add_u32 s{S_MA}, s{S_MA}, {UT+32}
    s_add_u32 s{S_MB}, s{S_MB}, {UT+32}
    s_add_u32 s{S_SELHI}, s{S_SELLO}, 0x02020202
    s_mov_b32 s{S_HIMASK}, 0xffff0000
    """)
    if STM[0]:
        a(f"""
        s_and_b32 s{S_QD}, s{S_WAVE}, 3
        s_lshl_b32 s{S_QD}, s{S_QD}, 7
        s_and_b32 s{S_T+5}, s{S_WAVE}, 1
        s_and_b32 s{S_T+6}, s{S_WAVE}, 2
        s_lshl3_add_u32 s{S_T+5}, s{S_T+5}, s{S_T+6}
        """)
    else:
        a(f"""
        s_lshl_b32 s{S_QD}, s{S_WAVE}, 6
        s_and_b32 s{S_T+5}, s{S_WAVE}, 3
        s_lshr_b32 s{S_T+6}, s{S_WAVE}, 2
        s_lshl1_add_u32 s{S_T+5}, s{S_T+5}, s{S_T+6}
        s_lshl_b32 s{S_T+5}, s{S_T+5}, 1
        """)
    if opt.get('pads', 2) == 2:
        pads()
    cread = [f'ds_read_b128 {vr(TB, 4)}, v{V_BR} offset:{7*US}', f'ds_read_b128 {vr(TB+4, 4)}, v{V_BR} offset:{7*US + 1024}'] + \
            [f'ds_read_b128 {vr(V_BAND+4*k, 4)}, v{V_BR} offset:{US*k}' for k in range(7)]

    def lcadd(r):
        k = LC_ORDER.index(r)
        return (f'v_add_u32_sdwa v{r}, s{LC_BASE.get(r, S_BASE)}, v{TB + k//2} dst_sel:DWORD dst_unused:UNUSED_PAD '
                f'src0_sel:DWORD src1_sel:WORD_{k & 1}')
    later_v1 = [lcadd(r) for r in LC_ORDER if r not in (V_YR, V_XR, V_USW)] + [
        f'v_mov_b32 v{V_ESEL}, v{TB+7}', f'v_add_u32 v{V_SR2}, {4*RS}, v{V_SR}',
        f'v_lshl_add_u32 v{V_OUT}, v{V_SW}, 11, s{S_CG}']
    ampstamp(7)
    stamp(a)

    DT = V_CC + 4
    a(f'v_lshlrev_b32 v{DT}, 16, v{V_PAR+6}')
    ampstamp(1)
    a(f'''
    v_mul_f32 v{DT}, 0x3fb8aa3b, v{DT}
    v_exp_f32 v{DT}, v{DT}
    v_cvt_pk_bf16_f32 v{DT}, v{DT}, v{DT}
    v_lshlrev_b32 v{DT}, 16, v{DT}
    v_mul_f32 v{V_CC}, 0x3fb8aa3b, v{DT}
    v_mul_f32 v{V_CC+1}, 0.15915494, v{DT}
    ''')
    stamp(a)

    names = ['z', 'z2', 'E', 'EH', 'B', 'C', 'W0', 'W1', 't0', 't1']
    R = {n: V_W + 2 * k for k, n in enumerate(names)}
    hn = ['A1', 'A2', 'A4', 'A256', 'A512', 'A1024'] + [f'Y{j}' for j in range(1, 17)] + \
         ['P0', 'P1', 'P2', 'P3', 'P4', 'P6', 'P8', 'Pa', 'Pb', 'h0', 'h1', 'o0', 'o1', 'o2', 'o3']
    Hh = {n: V_W + 2 * len(names) + k for k, n in enumerate(hn)}
    assert V_W + 2 * len(names) + len(hn) <= V_FR
    cnt = [0]

    def p(n):
        return vr(R[n], 2)

    def cmul(d, x, y):
        t = 't%d' % (cnt[0] % 2)
        cnt[0] += 1
        return [f'v_pk_mul_f32 {p(t)}, {p(x)}, {p(y)} op_sel_hi:[1,0]',
                f'v_pk_fma_f32 {p(d)}, {p(x)}, {p(y)}, {p(t)} op_sel:[1,1,0] op_sel_hi:[0,1,1] neg_lo:[1,0,0]']

    def sq(n, packed):
        if packed:
            return cmul(n, n, n)
        t = R['t%d' % (cnt[0] % 2)]
        cnt[0] += 1
        x = R[n]
        if opt.get('omod', 0):
            return [f'v_mul_f32 v{t}, v{x+1}, v{x+1}', f'v_mul_f32_e64 v{x+1}, v{x}, v{x+1} mul:2', f'v_fma_f32 v{x}, v{x}, v{x}, -v{t}']
        return [f'v_mul_f32 v{t}, v{x+1}, v{x+1}', f'v_mul_f32 v{t+1}, v{x}, v{x+1}',
                f'v_fma_f32 v{x}, v{x}, v{x}, -v{t}', f'v_add_f32 v{x+1}, v{t+1}, v{t+1}']

    def cvt(d, n, neg=False):
        return [f'v_cvt_pk_f16_f32 v{Hh[d]}, v{R[n]}, {"-" if neg else ""}v{R[n]+1}']

    def hmul(d, x, y, conj):
        t = Hh['h%d' % (cnt[0] % 2)]
        cnt[0] += 1
        d, x, y = Hh[d], Hh[x], Hh[y]
        return [f'v_pk_mul_f16 v{t}, v{x}, v{y} op_sel_hi:[1,0]',
                f'v_pk_fma_f16 v{d}, v{x}, v{y}, v{t} op_sel:[1,1,0] op_sel_hi:[0,1,1] neg_{"hi" if conj else "lo"}:[1,0,0]']

    def wr(n, row):
        return [f'ds_write_addtid_b32 v{Hh[n]} offset:{row*ROW}']

    def unpack(ps, k, r):
        return f'v_lshlrev_b32 v{r}, 16, v{V_PAR+k}' if ps == 0 else f'v_and_b32 v{r}, s{S_HIMASK}, v{V_PAR+k}'

    def setup(ps, packed):
        z, E = R['z'], R['E']
        o = [unpack(ps, 0, z), unpack(ps, 1, z + 1)]
        if packed:
            o += [f"v_pk_mul_f32 {p('z')}, {p('z')}, {vr(V_CC, 2)}"]
        else:
            o += [f'v_mul_f32 v{z}, v{z}, v{V_CC}', f'v_mul_f32 v{z+1}, v{z+1}, v{V_CC+1}']
        o += [f'v_rndne_f32 v{E}, v{z+1}', f'v_exp_f32 v{z}, v{z}', f'v_sub_f32 v{z+1}, v{z+1}, v{E}',
              f'v_cos_f32 v{E}, v{z+1}', f'v_sin_f32 v{E+1}, v{z+1}']
        if packed:
            o += [f"v_pk_mul_f32 {p('E')}, {p('E')}, {p('z')} op_sel_hi:[1,0]"]
        else:
            o += [f'v_mul_f32 v{E}, v{E}, v{z}', f'v_mul_f32 v{E+1}, v{E+1}, v{z}']
        o += cvt('A1', 'E') + sq('E', packed) + cvt('A2', 'E') + sq('E', packed) + cvt('A4', 'E')
        for j in (1, 2, 4, 8, 16)[:opt.get('pre1', 3) if ps else 0]:
            o += sq('E', packed) + cvt(f'Y{j}', 'E')
        return o

    def high():
        return sq('E', True) + cvt('A256', 'E') + sq('E', True) + cvt('A512', 'E') + sq('E', True) + cvt('A1024', 'E')

    def units(ps):
        U = []
        oc = [0]

        def out():
            oc[0] += 1
            return 'o%d' % (oc[0] % 4)
        order = [1, 2, 3, 4, 5, 8, 6, 7, 9, 16] + [j for j in range(10, 32) if j != 16]
        if ps and opt.get('pre1', 3) == 3:
            order = [8, 1, 16, 2, 3, 4] + [j for j in range(5, 32) if j not in (8, 16)]
        for j in order:
            hi = 1 << (j.bit_length() - 1)
            d = f'Y{j}' if j <= 16 else out()
            if j == hi:
                done_ = ps and j.bit_length() <= opt.get('pre1', 3)
                U.append(([] if done_ else sq('E', True) + cvt(d, 'E')) + wr(d, j))
            else:
                U.append(hmul(d, f'Y{j-hi}', f'Y{hi}', False) + wr(d, j))
        assert len(U) == 31

        def ux(d, x, y, val):
            d = d or out()
            return hmul(d, x, y, True) + wr(d, 32 + XROW[val])
        w = 'W%d' % ps
        U += [[f"v_pk_mul_f32 {p(w)}, {p(w)}, {sr(S_SC, 2)} op_sel_hi:[1,0]"] + cvt('P0', w, True) + wr('P0', 32 + XROW[0]),
              ux('P1', 'P0', 'A1', 1), ux('P2', 'P0', 'A2', 2), ux('P3', 'P1', 'A2', 3), ux('P4', 'P0', 'A4', 4),
              ux(None, 'P1', 'A4', 5), ux('P6', 'P2', 'A4', 6), ux(None, 'P3', 'A4', 7), ux('P8', 'P0', 'Y1', 8),
              ux(None, 'P0', 'A256', 256), ux(None, 'P2', 'A256', 258), ux(None, 'P4', 'A256', 260),
              ux(None, 'P6', 'A256', 262), ux(None, 'P8', 'A256', 264), ux('Pa', 'P4', 'A512', 516), ux('Pb', 'P8', 'A512', 520),
              ux(None, 'Pa', 'A256', 772), ux(None, 'Pb', 'A256', 776), ux('Pa', 'P8', 'A1024', 1032)]
        tail = [ux(None, 'Pa', 'A256', 1288), ux('Pb', 'Pa', 'A512', 1544), ux(None, 'Pb', 'A256', 1800)]
        return U, tail

    def yread(s):
        return f'ds_read_b128 {vr(V_FR+8*s+4, 4)}, v{V_YR} offset:{32*s}'

    def opreads(ps=1):
        o = []
        for s in range(8):
            o.append(Item(f'ds_read_b128 {vr(V_FR+8*s, 4)}, v{V_XR} offset:{32*s}', mw=['KG']))
            if not opt.get('yearly', 0) and not (ps == 0 and opt.get('ybc', 0)):
                o.append(Item(yread(s), mw=['KG']))
        return o

    def kmfma(ps):
        return [Item(f'v_mfma_f32_32x32x16_f16 {vr(V_D, 16)}, {vr(V_FR+8*s, 4)}, {vr(V_FR+8*s+4, 4)}, '
                     f'{"0" if (ps == 0 and s == 0) else vr(V_D, 16)}') for s in range(8)]

    def main(ps, extra):
        U, tail = units(ps)
        a.raw('.p2align 3')
        pend = []
        nb = opt.get('wb', 2)
        lad = opt.get('klad', 0)
        for k, u_ in enumerate(U):
            if extra.get(k) or len(pend) >= nb:
                for ln in pend:
                    a(ln)
                pend = []
            for f in extra.get(k, ()):
                f()
            if opt.get('stamps') == 4 and k % 8 == 0 and ps == opt.get('sps', 1):
                stamp(a, always=True)
            if lad and k % lad == 0:
                a(f's_setprio {3 - (k // lad) % 4}')
                a('s_nop 0')
            for ln in u_[:-1]:
                a(ln)
            pend.append(u_[-1])
        for ln in pend:
            a(ln)
        if opt.get('skip3', 1):
            a(f's_cmp_eq_u32 s{S_ROLE}, 0')
            a(f's_cbranch_scc1 L_skip{ps}')
        keep = list(a.lgkm)
        for ln in tail[0][:-1] + tail[1][:-1] + tail[0][-1:] + tail[1][-1:] + tail[2]:
            a(ln)
        if opt.get('skip3', 1):
            a.label(f'L_skip{ps}')
            a.lgkm = keep + [[]]
            a.lgkm.pop(len(keep) - 1)

    def extras(ps):
        ex = {}
        if opt.get('yearly', 0):
            for s in range(8):
                ex.setdefault(33 + 2 * s, []).append(lambda s=s: a(yread(s)))
        for key in ('yoff', 'yoff2'):
            pos_ = opt.get(key, 0)
            if pos_ and pos_ // 100 == ps:
                ex.setdefault(pos_ % 100, []).append(lambda: (a('s_setprio 0'), a('s_nop 0')))
        for key in ('yon1', 'yon2'):
            pos_ = opt.get(key, 0)
            if pos_ and pos_ // 100 == ps:
                def on(key=key):
                    a(f's_cmp_lt_u32 s{S_WAVE}, 4')
                    a(f's_cbranch_scc1 L_{key}')
                    a('s_setprio 1')
                    a('s_nop 0')
                    a.label(f'L_{key}')
                ex.setdefault(pos_ % 100, []).append(on)
        for k, key in ((2, 'u2'), (3, 'u3')):
            pos_ = opt.get(key, {2: 40, 3: 108}[k])
            if pos_ // 100 == ps:
                ex.setdefault(pos_ % 100, []).append(lambda k=k: uload(k))
        return ex

    sa, sb = setup(0, True), None
    for ln in sa:
        a(ln)
    ampstamp(2)
    if opt.get('pads', 2) == 1:
        a(f's_cmp_lg_u32 s{S_WAVE}, 0')
        a('s_cbranch_scc1 L_back0')
        a('s_mov_b64 exec, 0')
        a('s_branch L_main1')
        a.label('L_back0')
        a('s_mov_b64 exec, -1')
    a('s_barrier')
    stamp(a)
    ex = extras(0)

    def yprio(k):
        if opt.get('yp', 2) == k:
            a(f's_cmp_lt_u32 s{S_WAVE}, 4')
            a(f's_cbranch_scc1 L_yp')
            a('s_setprio 1')
            a.label('L_yp')
    yprio(1)

    def bc0():
        yprio(2)
        stamp(a)
        B, C, W0, W1, m = R['B'], R['C'], R['W0'], R['W1'], R['z']
        t = []
        for ps, w in ((0, 'W0'), (1, 'W1')):
            t += [unpack(ps, 2, B), unpack(ps, 3, B + 1), unpack(ps, 4, C), unpack(ps, 5, C + 1),
                  f"v_pk_mul_f32 {p('B')}, {p('B')}, {vr(DT, 2)} op_sel_hi:[1,0]"] + cmul(w, 'C', 'B')
        t += [f'v_max3_f32 v{m}, abs(v{W0}), abs(v{W0+1}), abs(v{W1})', f'v_max_f32_e64 v{m}, v{m}, abs(v{W1+1})']
        red = [f'v_max_f32_dpp v{m}, v{m}, v{m} {c} bank_mask:0xf' for c in
               ('row_shr:1 row_mask:0xf', 'row_shr:2 row_mask:0xf', 'row_shr:4 row_mask:0xf', 'row_shr:8 row_mask:0xf',
                'row_bcast:15 row_mask:0xa', 'row_bcast:31 row_mask:0xc')]
        fill = high() + [lcadd(r) for r in (V_YR, V_XR, V_USW)] + [f'v_lshlrev_b32 v{V_DSK}, 16, v{V_PAR+7}',
                                                                    f'v_cndmask_b32 v{V_DSK}, 0, v{V_DSK}, {sr(S_L0, 2)}']
        t = cread[:3] + t[:7] + cread[3:6] + t[7:14] + cread[6:] + t[14:]
        for ln in t:
            a(ln)
        for ln in red:
            for _ in range(2):
                if fill:
                    a(fill.pop(0))
            a(ln)
        if fill:
            a(fill.pop(0))
        a(f'v_readlane_b32 s{S_INV}, v{m}, 63')
        for ln in fill:
            a(ln)
        a(f"""
        ds_write_b16 v{V_USW}, v{V_US}
        s_and_b32 s{S_INV}, s{S_INV}, 0x7f800000
        s_max_u32 s{S_INV}, s{S_INV}, {40 << 23}
        s_min_u32 s{S_INV}, s{S_INV}, {254 << 23}
        s_sub_u32 s{S_INV}, s{S_INV}, {8 << 23}
        s_sub_u32 s{S_SC}, {254 << 23}, s{S_INV}
        v_mul_f32 v{V_DSK}, s{S_SC}, v{V_DSK}
        """)
        a.raw('.p2align 3')
        stamp(a)
    ex.setdefault(31, []).insert(0, bc0)
    main(0, ex)
    stamp(a)
    sa, sb = setup(1, False), []
    if opt.get('barm', 0):
        a('s_barrier')
    schedule(a, opreads(0) + [Item(x) for x in sa + sb] + kmfma(0), verbose=True, group=opt.get('grp0', 1), ahead=opt.get('ahead0', 16), hold=opt.get('hold', 0))
    if opt.get('pages', 1):
        a('s_branch L_main1')
        a.raw('.p2align 12')
    a.label('L_main1')
    if opt.get('pads', 2):
        a('s_cbranch_execz L_back0')
    if opt.get('pads', 2) == 1:
        a(f's_cmp_lg_u32 s{S_WAVE}, 0')
        a('s_cbranch_scc1 L_back1')
        a('s_mov_b64 exec, 0')
        a(f's_cmp_eq_u32 s{S_ROLE}, 0')
        a('s_cbranch_scc1 L_role0')
        a('s_branch L_role1')
        a.label('L_back1')
        a('s_mov_b64 exec, -1')
    a('s_barrier')
    stamp(a, always=opt.get('stamps') == 6)
    yprio(3)
    ex = extras(1)
    ex.setdefault(opt.get('hipos', 6), []).insert(0, lambda: [a(t) for t in high()])
    if opt.get('trapos', 0):
        def tra():
            a(f's_mov_b32 m0, s{S_MA}')
            for q in range(4):
                for hi_ in range(2):
                    a(f'v_perm_b32 v{V_US+2*(q%2)+hi_}, v{V_URAW[1]+q}, v{V_URAW[0]+q}, s{S_SELHI if hi_ else S_SELLO}')
                for hi_ in range(2):
                    a(f'ds_write_addtid_b32 v{V_US+2*(q%2)+hi_} offset:{(2*q+hi_)*US}')
            a(f's_mov_b32 m0, s{S_BASE}')
            a.raw('.p2align 3')
        ex.setdefault(opt['trapos'], []).append(tra)

        def bara():
            a.wait(lgkm=min(15, opt['barapos'] - opt['trapos']))
            a('s_barrier')
        if opt.get('barapos', 0):
            ex.setdefault(opt['barapos'], []).append(bara)
    main(1, ex)
    ampstamp(3)
    stamp(a, always=opt.get('stamps') != 6)
    if opt.get('uprobe'):
        a.wait(vm=2)
        stamp(a, always=True)
        a.wait(vm=0)
        ampstamp(4)
        stamp(a, always=True)
    if opt.get('barm', 0):
        a('s_barrier')

    a(f's_cmp_eq_u32 s{S_ROLE}, 0')
    a('s_cbranch_scc0 L_role1')
    b = a.fork()
    if opt.get('pages', 1):
        a('s_branch L_role0')
        a.raw('.p2align 12')
    a.label('L_role0')
    if opt.get('pads', 2):
        a('s_cbranch_execz L_back1')
    n0 = stamp_n[0]
    conv(a, 0, opt, stamp, opreads() + [Item(t) for t in later_v1], kmfma(1))
    finish(a, opt, stamp_n[0])
    stamp_n[0] = n0
    if opt.get('pages', 1):
        b.raw('.p2align 12')
    b.label('L_role1')
    if opt.get('pads', 2):
        b('s_cbranch_execz L_back1')
    conv(b, 1, opt, stamp, opreads() + [Item(t) for t in later_v1], kmfma(1))
    finish(b, opt, stamp_n[0])
    body = a.text() + b.text()
    return body, a, b


def finish(a, opt, nst):
    if opt.get('spin') or opt.get('amp'):
        lab = f'L_spin{id(a)}'
        a.wait(vm=0, lgkm=0)
        if opt.get('amp'):
            if opt.get('ampat'):
                a.raw('    s_sub_u32 s96, s100, s90')
                a.raw(f'    s_mul_i32 s96, s96, {opt["amp"]}')
                a.raw(f'    s_add_u32 s96, s96, 3000')
            else:
                a.raw(f'    s_memrealtime s[92:93]')
                a.raw('    s_waitcnt lgkmcnt(0)')
                a.raw('    s_sub_u32 s96, s92, s90')
                a.raw(f'    s_mul_i32 s96, s96, {opt["amp"]}')
        else:
            a.raw(f'    s_mov_b32 s96, {opt["spin"]}')
        a.label(lab)
        a.raw(f'    s_memrealtime s[92:93]')
        a.raw('    s_waitcnt lgkmcnt(0)')
        a.raw('    s_sub_u32 s92, s92, s90')
        a.raw('    s_cmp_lt_u32 s92, s96')
        a.raw(f'    s_cbranch_scc1 {lab}')
    if opt.get('stamps'):
        a.wait(vm=0, lgkm=0)
        a.raw(f'    {"s_memrealtime" if opt.get("rt") else "s_memtime"} {sr(S_STAMP + 2*nst, 2)}')
        a.raw(f'    s_memrealtime {sr(92, 2)}')
        a.raw('    s_waitcnt lgkmcnt(0)')
        a(f'v_mov_b32 v2, 0')
        for k in range(nst + 1):
            a(f's_sub_u32 s{S_T}, s{S_STAMP+2*k}, s{S_STAMP}')
            a(f'v_writelane_b32 v2, s{S_T}, {k}')
        a(f'v_writelane_b32 v2, s90, 14')
        a(f'v_writelane_b32 v2, s92, 15')
        a(f'v_writelane_b32 v2, s{S_ROLE}, 16')
        a(f's_lshl_b32 s{S_T}, s2, 3')
        a(f's_add_u32 s{S_T}, s{S_T}, s{S_WAVE}')
        a(f's_lshl_b32 s{S_T}, s{S_T}, 8')
        a(f'v_lshl_add_u32 v3, v{V_LANE}, 2, s{S_T}')
        a(f'global_store_dword v3, v2, s[94:95]')
    a('s_endpgm')


SEQ = {
    1: [
        [('T23',), ('T1',), ('KF',), ('B3', 0), ('G', 2), ('B2', 1), ('B3', 1), ('D3', 0, 5), ('D3', 0, 6), ('D3', 0, 7),
         ('B2', 2), ('B3', 2), ('FX', 5), ('G', 3), ('D2', 1, 5), ('D3', 1, 5), ('D3', 1, 6), ('D3', 1, 7), ('TRB',),
         ('B2', 3), ('FX', 6), ('D2', 2, 5), ('D2', 2, 6), ('D3', 2, 6), ('D3', 2, 7), ('D2', 3, 5), ('D2', 3, 6), ('G', 4),
         ('W', 24, 40), ('OUT', 5), ('B2', 4), ('G', 5), ('W', 41, 44), ('D2', 4, 6), ('W', 45, 48), ('OUT', 6),
         ('D2', 3, 7), ('B2', 5), ('B3', 3), ('FX', 7), ('D2', 4, 7), ('W', 49, 52), ('D2', 5, 7), ('D3', 3, 7), ('W', 53, 56), ('OUT', 7)],
    ],
    0: [
        [('T23',), ('T1',), ('KF',), ('B2', 0), ('B2', 1), ('B3', 0), ('D2', 0, 2), ('D2', 0, 3), ('D2', 1, 3), ('W', -8, 0), ('OUT', 0),
         ('W', 1, 4), ('TRB',), ('W', 5, 8), ('OUT', 1), ('G', 2), ('W', 9, 16), ('OUT', 2), ('W', 17, 24), ('OUT', 3),
         ('B2', 2), ('D2', 0, 4), ('D2', 1, 4), ('D3', 0, 4), ('FX', 4), ('W', 25, 28), ('D2', 2, 4), ('W', 29, 32), ('OUT', 4)],
        [('T23',), ('T1',), ('KF',), ('B2', 0), ('B2', 1), ('G', 2), ('B3', 0), ('B2', 2), ('D2', 0, 2), ('D2', 0, 3), ('D2', 1, 3),
         ('W', -8, 0), ('OUT', 0), ('W', 1, 4), ('TRB',), ('W', 5, 8), ('OUT', 1), ('W', 9, 16), ('OUT', 2), ('W', 17, 24), ('OUT', 3),
         ('D2', 0, 4), ('D2', 1, 4), ('D3', 0, 4), ('FX', 4), ('W', 25, 28), ('D2', 2, 4), ('W', 29, 32), ('OUT', 4)],
        [('T1',), ('T23',), ('KF',), ('B2', 0), ('B2', 1), ('B3', 0), ('W', -8, -5), ('D2', 0, 2), ('W', -4, 0), ('OUT', 0), ('TRB',),
         ('W', 1, 8), ('OUT', 1), ('G', 2), ('W', 9, 16), ('OUT', 2), ('D2', 0, 3), ('D2', 1, 3), ('W', 17, 24), ('OUT', 3),
         ('B2', 2), ('D2', 0, 4), ('D2', 1, 4), ('D3', 0, 4), ('FX', 4), ('W', 25, 28), ('D2', 2, 4), ('W', 29, 32), ('OUT', 4)],
        [('T23',), ('T1',), ('KF',), ('B2', 0), ('B2', 1), ('B3', 0), ('D2', 0, 2), ('D2', 0, 3), ('D2', 1, 3), ('W', -8, 0), ('OUT', 0), ('TRB',),
         ('W', 1, 8), ('OUT', 1), ('G', 2), ('W', 9, 16), ('OUT', 2), ('W', 17, 24), ('OUT', 3),
         ('B2', 2), ('D2', 0, 4), ('D2', 1, 4), ('D3', 0, 4), ('FX', 4), ('W', 25, 28), ('D2', 2, 4), ('W', 29, 32), ('OUT', 4)],
        [('T23',), ('T1',), ('KF',), ('B2', 0), ('B2', 1), ('B3', 0), ('D2', 0, 2), ('D2', 0, 3), ('D2', 1, 3), ('D2', 0, 4), ('D2', 1, 4),
         ('D3', 0, 4), ('FX', 4), ('TRB',), ('W', -8, 0), ('OUT', 0),
         ('W', 1, 8), ('OUT', 1), ('G', 2), ('W', 9, 16), ('OUT', 2), ('W', 17, 24), ('OUT', 3),
         ('B2', 2), ('W', 25, 28), ('D2', 2, 4), ('W', 29, 32), ('OUT', 4)],
    ],
}


def conv(a, role, opt, stamp, opreads, kmfma):
    opt = dict(opt)
    opt.update({k[3:]: v for k, v in opt.items() if k.startswith(f'r{role}_')})
    tiles = [0, 1, 2, 3, 4] if role == 0 else [5, 6, 7]
    uoff = 1024 if role == 0 else 0
    acc = {it: V_ACC + 4 * k for k, it in enumerate(tiles)}
    started = set()
    L = []

    def I(text, **kw):
        for ln in text.strip().split('\n'):
            if ln.strip():
                L.append(Item(ln.strip(), **kw))

    def mf(d, x, y, first):
        I(f'v_mfma_f32_16x16x32_bf16 {vr(d, 4)}, {vr(x, 4)}, {vr(y, 4)}, {"0" if first else vr(d, 4)}')

    def accum(it, x, y):
        mf(acc[it], x, y, it not in started)
        started.add(it)

    def mark():
        if opt.get('stamps') and 'sa' not in opt and opt.get('stamps') != 6:
            last = [x for x in L if x.kind == 'mfma'][-1]
            tag = f'stamp{len(L)}'
            last.mw.add(tag)
            L.append(Item(fn=lambda e: stamp(a, always=True), mw=[tag, 'stamps']))

    mt2 = sorted({it - d for it in tiles for d in (2, 3, 4) if it - d >= 0})
    mt3 = sorted({it - d for it in tiles for d in (4, 5, 6, 7) if it - d >= 0})
    mts = sorted(set(mt2) | set(mt3))
    d3 = sorted({it - mt for it in tiles for mt in mt3 if 4 <= it - mt <= 7})
    if role == 1:
        rawseq = [232, 68, 76] * 3 + [232, 68, 240] * 3
        G = {0: V_G, 1: V_G + 4, 2: V_G, 3: V_G + 4, 4: V_G, 5: V_G}
        pk2 = {mt: V_PK + 12 * (mt % 2) for mt in mt2}
        pk3 = {mt: V_PK + 12 * (mt % 2) + 8 for mt in mt3}
        tA = 1018
    else:
        rawseq = [232, 176, 200, 232, 176, 232, 176]
        G = {0: V_G, 1: V_G + 4, 2: V_G + 4}
        pk2 = {0: V_PK, 1: V_PK + 8, 2: V_PK + 16}
        pk3 = {0: V_K3F + 4}
        tA = 1018
    ring = [12, 16, V_D + 4, V_D, V_D + 12, V_D + 8, 20][:opt.get('ring', 7)]
    OUTR = V_TT

    def gread(mt):
        I(f'ds_read_b128 {vr(G[mt], 4)}, v{V_UF} offset:{uoff + 512*mt}', mr=['pubA' if 256 * mt + 250 <= tA else 'pubB'])
    D = V_D
    TA, TB, TC, TD = V_TT + 4, V_TT + 5, V_TT + 6, V_TT + 7
    KF = V_BAND + 24

    def t23():
        I(f"""
        v_mov_b32 v{TA}, v{D+10}
        v_cvt_pk_bf16_f32 v{TB}, v{D+11}, v{D+12}
        v_cvt_pk_bf16_f32 v{TC}, -v{D+10}, v{V_ZERO}
        v_mov_b32_dpp v{TA}, v{D+9} wave_shl:1 row_mask:0xf bank_mask:0xf
        v_cvt_pk_bf16_f32 v{TA}, v{D+10}, v{TA}
        """)
        I(f'ds_write_addtid_b32 v{TA} offset:{T2+120}', mw=['T2a'])
        I(f'ds_write_addtid_b32 v{TA} offset:{T2+T2B+120}', mw=['T2b'])
        I(f'ds_write_b16 v{V_T3W}, v{TB}', mw=['T3a'])
        if role == 1:
            I(f'ds_write_b16_d16_hi v{V_T3W}, v{TB} offset:64', mw=['T3b'])
        I(f'v_readlane_b32 s{S_KN}, v{TC}, 63')

    def kfix():
        for q in range(4):
            I(f'v_mul_u32_u24 v{KF+q}, s{S_KN}, v{KF+q}')

    k2_done, k3_done = set(), set()

    def k2read(dl):
        if dl in k2_done:
            return
        k2_done.add(dl)
        k = dl - 2
        for q in range(2):
            I(f'ds_read_b128 {vr(V_K2F+8*k+4*q, 4)}, v{V_K2} offset:{128*k + 16*q}', mr=['T2a', 'T2b'])

    def k3read(dl):
        if dl in k3_done:
            return
        k3_done.add(dl)
        k = dl - 4
        I(f'ds_read2_b32 {vr(V_K3F+4*k, 2)}, v{V_K3} offset0:{16*k} offset1:{16*k+1}', mr=['T3a', 'T3b'])
        I(f'ds_read2_b32 {vr(V_K3F+4*k+2, 2)}, v{V_K3} offset0:{16*k+2} offset1:{16*k+3}', mr=['T3a', 'T3b'])

    def t1():
        for k, r in enumerate([8, 2, 3, 4, 5, 6, 7, 1]):
            t = V_TT + (k % 4)
            I(f'v_cvt_pk_bf16_f32 v{t}, v{D+r}, v{D+r-1}')
            I(f'ds_write_addtid_b32 v{t} offset:{4*t1_dword(0, r, 0)}', mr=['KG'], mw=['T1'])
            I(f'ds_write_addtid_b32 v{t} offset:{4*t1_dword(1, r, 0)}', mr=['KG'], mw=['T1'])
            if r == 8:
                I(f"""
                v_readlane_b32 s{S_T}, v{t}, 63
                v_cvt_pk_bf16_f32 v{TD}, v{D}, v{D+9}
                v_readlane_b32 s{S_T+1}, v{TD}, 0
                v_mov_b32 v{TD}, s{S_T}
                v_perm_b32 v{TD}, v{TD}, s{S_T+1}, v{V_ESEL}
                """)
        I(f'ds_write_b32 v{V_EW}, v{TD}', mr=['KG'], mw=['T1e'])

    def kdread(s):
        I(f'ds_read_b64 {vr(V_KD+4*s, 2)}, v{V_K1A} offset:{16*s}', mr=['T1'] + ['T1e'] * (s in (0, 16)))
        I(f'ds_read_b64 {vr(V_KD+4*s+2, 2)}, v{V_K1B} offset:{16*s}', mr=['T1'] + ['T1e'] * (s in (0, 16)))

    ucount = [0]

    rawuse = {}
    holds = {}

    def unit(mt, b0, dst, stride):
        pool = [232, 68] if role else [232, 176]
        if trb_done:
            pool.append(240)
        elif role == 1 and not ({0, 1} & kd_done):
            pool.append(76)
        elif role == 0 and mt != 2 and holds.get(pk2[2]) is None:
            pool.append(200)
        r = min(pool, key=lambda x: rawuse.get(x, -1))
        rawuse[r] = ucount[0]
        ucount[0] += 1
        assert holds[G[mt]] == ('G', mt)
        mf(r, G[mt], V_BAND + 4 * b0, True)
        mf(r + 4, G[mt], V_BAND + 4 * b0 + 4, True)
        for jj in range(4):
            I(f'v_cvt_pk_bf16_f32 v{dst+stride*jj}, v{r+3-jj}, v{r+7-jj}')

    def token(t):
        k = t[0]
        if k == 'G':
            assert 256 * t[1] + 250 <= tA or pub_b
            gread(t[1])
            holds[G[t[1]]] = ('G', t[1])
        elif k == 'B2':
            unit(t[1], 0, pk2[t[1]], 2)
            unit(t[1], 2, pk2[t[1]] + 1, 2)
            holds[pk2[t[1]]] = ('B2', t[1])
        elif k == 'B3':
            unit(t[1], 4, pk3[t[1]], 1)
            holds[pk3[t[1]]] = ('B3', t[1])
        elif k == 'D2':
            mt, it = t[1:]
            assert holds[pk2[mt]] == ('B2', mt) and 'T23' in holds and ('OUT', it) in todo
            k2read(it - mt)
            accum(it, pk2[mt], V_K2F + 8 * (it - mt - 2))
            accum(it, pk2[mt] + 4, V_K2F + 8 * (it - mt - 2) + 4)
        elif k == 'D3':
            mt, it = t[1:]
            assert holds[pk3[mt]] == ('B3', mt) and 'T23' in holds and ('OUT', it) in todo
            k3read(it - mt)
            accum(it, pk3[mt], V_K3F + 4 * (it - mt - 4))
        elif k == 'FX':
            assert holds[G[t[1] - 4]] == ('G', t[1] - 4) and 'KF' in holds and ('OUT', t[1]) in todo
            accum(t[1], KF, G[t[1] - 4])
        elif k == 'W':
            for w in range(t[1], t[2] + 1):
                assert w == wnext[0] and 'T1' in holds and 'T23' in holds and (32 * w + 266 <= tA or pub_b)
                wnext[0] += 1
                direct(w)
        elif k == 'KD':
            for s_ in t[1:]:
                if s_ not in kd_done:
                    kdread(s_)
                    kd_done.add(s_)
        elif k == 'T1':
            t1()
            holds['T1'] = 1
        elif k == 'T23':
            t23()
            holds['T23'] = 1
        elif k == 'KF':
            assert 'T23' in holds
            kfix()
            holds['KF'] = 1
        elif k == 'TRB':
            transpose(1)
            trb_done.append(1)
            if role:
                pub_b.append(1)
            I(f's_mov_b32 m0, s{S_BASE}')
        elif k == 'OUT':
            assert wnext[0] > 8 * t[1]
            if trb_done:
                pub_b.append(1)
            stage(t[1]); store(t[1])
        todo.discard(t)

    wlo = max(8 * tiles[0] - 16, -8)
    whi = 8 * tiles[-1]

    def stage(it):
        slot = tiles.index(it)
        t = V_US + 2 * (slot % 2)
        lastm = max(k for k, x in enumerate(L) if x.kind == 'mfma' and f'v{acc[it]}' in x.dst)
        n0 = len(L)
        for q in range(4):
            I(f'v_mul_f32 v{acc[it]+q}, s{S_INV}, v{acc[it]+q}', prio=0)
        I(f'v_cvt_pk_bf16_f32 v{t}, v{acc[it]}, v{acc[it]+1}', prio=0)
        I(f'v_cvt_pk_bf16_f32 v{t+1}, v{acc[it]+2}, v{acc[it]+3}', prio=0)
        I(f'ds_write_addtid_b32 v{t} offset:{STG + 512*slot}', mr=['KG'], mw=[f'stg{it}'], prio=0)
        I(f'ds_write_addtid_b32 v{t+1} offset:{STG + 512*slot + 256}', mr=['KG'], mw=[f'stg{it}'], prio=0)
        for x in L[n0:]:
            x.want = (lastm, opt.get('want', 6))

    def store(it):
        slot = tiles.index(it)
        o = OUTR + 4 * (slot % 2)
        old = (slot + len(tiles)) % 2 == opt.get('lastold', 1)
        cond = f's_cmp_{"ge" if old else "lt"}_u32 s{S_WAVE}, 4'
        last = it == tiles[-1]
        mark_ = []

        def fn(ent):
            if a.vm:
                a.wait(vm=0)
            a(cond)
            stamp(a, late=True)
            a.barrier() if ent is None else a.barrier_for(ent)
            a(f's_cbranch_scc1 L_tr{it}')
            a.raw(f'    ds_read_b64_tr_b16 {vr(o, 2)}, v{V_SR} offset:{512*slot}')
            a.raw(f'    ds_read_b64_tr_b16 {vr(o+2, 2)}, v{V_SR2} offset:{512*slot}')
            if last or opt.get('st1', 0):
                a.raw(f'    s_mov_b32 s{S_TILE}, {it*524288}')
                a.raw(f'    s_waitcnt lgkmcnt(0)')
                a.raw(f'    buffer_store_dwordx4 {vr(o, 4)}, v{V_OUT}, {sr(S_OUT, 4)}, s{S_TILE} offen')
            a.label(f'L_tr{it}')
            mark_.append(a.stats.get('lds', 0))

        def fn2(ent):
            a(cond)
            a(f's_cbranch_scc1 L_st{it}')
            a.raw(f'    s_mov_b32 s{S_TILE}, {it*524288}')
            a.raw(f'    s_waitcnt lgkmcnt({min(15, a.stats.get("lds", 0) - mark_[0])})')
            a.raw(f'    buffer_store_dwordx4 {vr(o, 4)}, v{V_OUT}, {sr(S_OUT, 4)}, s{S_TILE} offen')
            a.label(f'L_st{it}')
        mb = bool(merge_b) and merge_b.pop()
        if not STM[0]:
            def fb(ent):
                stamp(a, late=True)
                a.barrier() if ent is None else a.barrier_for(ent)
            lastm = max(k for k, x in enumerate(L) if x.kind == 'mfma' and f'v{acc[it]}' in x.dst)
            L.append(Item(fn=fb, mr=[f'stg{it}'] + ['uB'] * mb, mw=['bar', f'pub{it}'] + ['pubB'] * mb, cost=8,
                          delay=0 if last else opt.get('bdelay', 128)))
            n0 = len(L)
            I(f'ds_read_b64_tr_b16 {vr(o, 2)}, v{V_SR} offset:{512*slot}', mr=[f'pub{it}'], prio=0)
            I(f'ds_read_b64_tr_b16 {vr(o+2, 2)}, v{V_SR2} offset:{512*slot}', mr=[f'pub{it}'], prio=0)
            I(f's_mov_b32 s{S_TILE}, {it*524288}', prio=0)
            I(f'buffer_store_dwordx4 {vr(o, 4)}, v{V_OUT}, {sr(S_OUT, 4)}, s{S_TILE} offen' + (' sc1' if opt.get('wt', 0) >> it & 1 else ''), prio=0)
            for x in L[n0:]:
                x.want = (lastm, opt.get('want', 6) + 10)
            return
        regs = [f'v{o+k}' for k in range(4)]
        L.append(Item(fn=fn, mr=[f'stg{it}'] + ['uB'] * mb, mw=['bar', f'pub{it}'] + ['pubB'] * mb, cost=8, dst=regs,
                      src=[f'v{V_SR}', f'v{V_SR2}', f'v{V_OUT}'], delay=0 if last else opt.get('bdelay', 128)))
        if not (last or opt.get('st1', 0)):
            L.append(Item(fn=fn2, mr=[f'pub{it}'], mw=[f'pub{it}x'], cost=8, delay=opt.get('sdel', 4) if opt.get('gap', 1) else 128))
            L[-1].src = set(regs)
            L[-1].after = opt.get('sdel', 4)

    kd_done = set()
    merge_b = []
    trb_done, pub_b, wnext = [], [], [wlo]

    def direct(w):
        for it in tiles:
            s = 8 * it - w
            if 0 <= s <= 16 and s not in kd_done:
                kdread(s)
                kd_done.add(s)
        I(f'ds_read_b128 {vr(ring[(w - wlo) % len(ring)], 4)}, v{V_UF} offset:{uoff + 64*w + 32}',
          mr=['pubA' if 32 * w + 266 <= tA else 'pubB'])
        for it in tiles:
            s = 8 * it - w
            if 0 <= s <= 16:
                accum(it, V_KD + 4 * s, ring[(w - wlo) % len(ring)])

    def transpose(pair):
        nm = 'AB'[pair]
        nb = opt.get(f'trb{role}', 1300) if pair else 0
        I(f's_mov_b32 m0, s{S_MB if pair else S_MA}')
        for q in range(4):
            for hi_ in range(2):
                t = V_US + (2 * q + hi_) % 4
                I(f'v_perm_b32 v{t}, v{V_URAW[2*pair+1]+q}, v{V_URAW[2*pair]+q}, s{S_SELHI if hi_ else S_SELLO}', notbefore=nb)
                I(f'ds_write_addtid_b32 v{t} offset:{(2*q+hi_)*US}', mw=['u' + nm])

        def fn(ent):
            stamp(a, late=True)
            a.barrier() if ent is None else a.barrier_for(ent)
        if pair and role == 0:
            merge_b.append(1)
            return
        L.append(Item(fn=fn, mr=['u' + nm], mw=['bar', 'pub' + nm], cost=8, delay=opt.get('udel', 32) if pair else 0))

    todo = set()
    for it in tiles:
        todo.add(('OUT', it))
        for mt in mts:
            if 2 <= it - mt <= 4:
                todo |= {('D2', mt, it), ('B2', mt), ('G', mt)}
            if 4 <= it - mt <= 7:
                todo |= {('D3', mt, it), ('B3', mt), ('G', mt)}
            if it - mt == 4:
                todo.add(('FX', it))
    L += opreads
    if not opt.get('trapos', 0):
        transpose(0)
        I(f's_mov_b32 m0, s{S_BASE}')
    elif not opt.get('barapos', 0):
        k_ = [x for x in L if x.kind == 'lds'][opt.get('barak', 1)]
        k_.mw.add('uA')
        L.append(Item(fn=lambda e: (stamp(a, late=True), a.barrier()), mr=['uA'], mw=['bar', 'pubA'], cost=8))
    for mt in (0, 1):
        token(('G', mt))
    L += kmfma
    mark()
    I(f'v_add_f32 v{D}, v{D}, v{V_DSK}')
    for t in opt.get('tokens') or SEQ[role][opt.get(f'seq{role}', 0)]:
        token(t)
    assert not todo and wnext[0] == whi + 1, todo
    if opt.get('gap', 1):
        gapsched(a, L, dl=opt.get('dl', 5), dm=opt.get('dm', 3), dw=opt.get('dw', 4), nmax=opt.get('nmax', 2), v2=opt.get('v2', 0),
                 slack=opt.get('slack', 0), window=opt.get('win', 8), ladder=opt.get('ladder', 4), verbose=opt.get('verb', 1),
                 lskip=opt.get('lskip', 0), mixw=opt.get('mixw', 3) / 10, dlbig=opt.get('dlbig', 2))
    else:
      schedule(a, L, verbose=True, ladder=opt.get('ladder', 4), lskip=opt.get('lskip', 0),
             anneal=[str(opt['sa']), str(opt.get('seed', 1)), 'B=1', f'LAT={opt.get("LAT", 44)}', f'MB={opt.get("MB", 8)}', f'J={opt.get("J", 8)}', f'NS={opt.get("NS", 2)}', f'lag={opt.get("lag", -200)}', 'p1=1', f'S={opt.get("S", 520)}', f'T0={opt.get("T0", 12)}'] if 'sa' in opt else None, ahead_v=opt.get('aheadv', 16), hold=opt.get('hold', 0), merge=opt.get('merge', 40), ahead=opt.get('ahead', 16),
             lds_lat=opt.get('lat', 110), inorder_mfma=opt.get('inord', 0), group=opt.get('grp', 1),
             drop=[n for b_, n in enumerate(['mfma', 'valu', 'ldsr', 'ldsw']) if opt.get('drop', 0) >> b_ & 1])
    stamp(a, late=True, always=opt.get('stamps') == 6)


HEADER = open('standalone__ssm_conv_s4__prompt.s.ref').read().split('; Override launch')[0]


def build(opt):
    STM[0] = opt.get('stm', 0)
    body, a, b = gen(opt)
    s = HEADER
    s += f'; @launch grid=(256,1,1) block=(512,1,1) lds={LDS_BYTES}\n'
    s += '.amdgcn_target "amdgcn-amd-amdhsa--gfx950"\n.text\n'
    s += f'.globl {KNAME}\n.p2align 8\n.type {KNAME},@function\n{KNAME}:\n'
    s += body
    s += 'L_end:\n    s_endpgm\n'
    s += '; per-lane LDS offsets (16-bit pairs) and the 0/1 band matrices, read as data\n.p2align 7\nL_tbl:\n' + tables()
    s += f'''.section .rodata,"a"
.p2align 6
.amdhsa_kernel {KNAME}
  .amdhsa_next_free_vgpr 256
  .amdhsa_next_free_sgpr 102
  .amdhsa_accum_offset 256
  .amdhsa_group_segment_fixed_size 0
  .amdhsa_kernarg_size 96
  .amdhsa_user_sgpr_count 2
  .amdhsa_user_sgpr_kernarg_segment_ptr 1
  .amdhsa_system_sgpr_workgroup_id_x 1
{'  .amdhsa_ieee_mode 0' + chr(10) if opt.get('omod', 0) else ''}.end_amdhsa_kernel
'''
    return s, a, b


def fromjson(d):
    return {k: ([tuple(t) for t in v] if k.endswith('tokens') else v) for k, v in d.items()}


if __name__ == '__main__':
    out = sys.argv[1]
    opt = {}
    for kv in sys.argv[2:]:
        k, v = kv.split('=')
        if k == 'json':
            import json
            opt.update(fromjson(json.load(open(v))))
        else:
            opt[k] = int(v)
    s, a, b = build(opt)
    open(out, 'w').write(s)
    print('role0+common', a.stats, 'nops', a.nops, '| role1', b.stats, 'nops', b.nops)
```
